```python
import torch

def _softmax(x, axis=-1):
    return torch.softmax(x, dim=axis)
def _gelu(x):
    return torch.nn.functional.gelu(x, approximate="tanh")
def _silu(x):
    return torch.nn.functional.silu(x)
def _sigmoid(x):
    return torch.sigmoid(x)
def _layernorm(x, axis=-1, eps=1e-5):
    m = x.mean(dim=axis, keepdim=True)
    v = x.var(dim=axis, keepdim=True, unbiased=False)
    return (x - m) / torch.sqrt(v + eps)
def _scatter_add(tgt, idx, src, axis=0):
    return tgt.clone().index_add_(axis, idx, src)
def _segment_sum(src, seg, n):
    out = torch.zeros((n,) + src.shape[1:], dtype=src.dtype)
    return out.index_add_(0, seg, src)
def _pad(x, pw):
    flat = tuple(v for pair in reversed(pw) for v in pair)
    return torch.nn.functional.pad(x, flat)

kernel_name = 'interleave_layers__sliding_local_dilated__glu_gated_geglu__prompt'

def setup_inputs():

    _w = (lambda a: (lambda t: t.to(torch.bfloat16) if t.is_floating_point() else t)(torch.as_tensor(a)))
    def _A_setup():
        B, S, D = 1, 2048, 640
        return {
            "x": _w((lambda *s: torch.randn(*s, dtype=torch.bfloat16) * 0.05)(B, S, D)),
            "wqkv": _w((lambda *s: torch.randn(*s, dtype=torch.bfloat16) * 0.05)(D, 3 * D)),
            "wo": _w((lambda *s: torch.randn(*s, dtype=torch.bfloat16) * 0.05)(D, D)),
        }
    _A_in = _A_setup()

    def _B_setup():
        B, S, Dm, Df = 1, 2048, 640, 1728
        return {
            "x": _w((lambda *s: torch.randn(*s, dtype=torch.bfloat16) * 0.05)(B, S, Dm)),
            "w_gate": _w((lambda *s: torch.randn(*s, dtype=torch.bfloat16) * 0.8)(Dm, Df) * (Dm ** -0.5)),
            "w_up": _w((lambda *s: torch.randn(*s, dtype=torch.bfloat16) * 0.8)(Dm, Df) * (Dm ** -0.5)),
            "w_down": _w((lambda *s: torch.randn(*s, dtype=torch.bfloat16) * 0.8)(Df, Dm) * (Df ** -0.5)),
        }
    _B_in = _B_setup()

    return {
        "A_x": _A_in["x"],
        "A_wqkv": _A_in["wqkv"],
        "A_wo": _A_in["wo"],
        "B_x": _B_in["x"],
        "B_w_gate": _B_in["w_gate"],
        "B_w_up": _B_in["w_up"],
        "B_w_down": _B_in["w_down"],
    }

def reference(A_x, A_wqkv, A_wo, B_x, B_w_gate, B_w_up, B_w_down):
    def _A_ref(x, wqkv, wo):
        B, S, D = x.shape
        H = 32; Dh = D // H
        W, dil = 8, 2
        qkv = (lambda x, *d: x.permute(*d))((x @ wqkv).reshape(B, S, 3, H, Dh), 2, 0, 3, 1, 4)
        q, k, v = qkv[0], qkv[1], qkv[2]
        scale = Dh ** -0.5
        pos = torch.arange(S)
        off = torch.arange(W) * dil
        idx = pos[:, None] - off[None, :]
        mask = idx >= 0
        idx_c = torch.where(mask, idx, 0).reshape(-1)
        kg = k[:, :, idx_c, :].reshape(B, H, S, W, Dh)
        vg = v[:, :, idx_c, :].reshape(B, H, S, W, Dh)
        logits = torch.einsum("bhsd,bhswd->bhsw", q, kg) * scale
        logits = torch.where(mask[None, None, :, :], logits, -1e9)
        attn = _softmax(logits, axis=-1)
        o = torch.einsum("bhsw,bhswd->bhsd", attn, vg)
        return (lambda x, *d: x.permute(*d))(o, 0, 2, 1, 3).reshape(B, S, D) @ wo

    def _B_ref(x, w_gate, w_up, w_down):
        g = torch.einsum("bsd,df->bsf", x, w_gate)
        u = torch.einsum("bsd,df->bsf", x, w_up)
        h = _gelu(g) * u
        return torch.einsum("bsf,fd->bsd", h, w_down)

    x = A_x
    x = x + _A_ref(_layernorm(x, axis=-1), A_wqkv, A_wo)
    x = x + _B_ref(_layernorm(x, axis=-1), B_w_gate, B_w_up, B_w_down)
    x = x + _A_ref(_layernorm(x, axis=-1), A_wqkv, A_wo)
    x = x + _B_ref(_layernorm(x, axis=-1), B_w_gate, B_w_up, B_w_down)
    return x
```

```python
import re

TRANS = ('v_exp_f32','v_log_f32','v_rcp_f32','v_rsq_f32','v_sqrt_f32','v_sin_f32','v_cos_f32')

def regs_of(tok):
    tok = tok.strip()
    m = re.fullmatch(r'(-|abs\()?([vas])(\d+)\)?', tok)
    if m: return [(m.group(2), int(m.group(3)))]
    m = re.fullmatch(r'(-)?([vas])\[(\d+):(\d+)\]', tok)
    if m: return [(m.group(2), i) for i in range(int(m.group(3)), int(m.group(4))+1)]
    if tok == 'vcc': return [('s','vcc')]
    if tok in ('exec','exec_lo','exec_hi'): return [('s','exec')]
    if tok == 'm0': return [('s','m0')]
    if tok == 'scc': return [('s','scc')]
    return []

def split_ops(rest):
    out=[]; depth=0; cur=''
    for ch in rest:
        if ch=='[': depth+=1
        if ch==']': depth-=1
        if ch==',' and depth==0:
            out.append(cur.strip()); cur=''
        else: cur+=ch
    if cur.strip(): out.append(cur.strip())
    if out:
        last=out[-1].split()
        out[-1]=last[0] if last else ''
        mods=last[1:]
    else: mods=[]
    return out, mods

class Ins:
    __slots__=('text','op','dst','src','kind','mods','passes','srcC','isnop','nws')
    def __init__(self, text):
        self.text=text
        t=text.split(';')[0].strip()
        parts=t.split(None,1)
        self.op=parts[0]
        ops,mods=split_ops(parts[1]) if len(parts)>1 else ([],[])
        self.mods=mods
        op=self.op
        self.dst=[]; self.src=[]; self.passes=0; self.srcC=[]; self.nws=1
        R=[regs_of(o) for o in ops]
        if op.startswith('v_mfma'):
            self.kind='mfma'
            self.passes = 8 if '32x32x16' in op else 4
            self.dst=R[0]; self.src=R[1]+R[2]+R[3]; self.srcC=R[3]
        elif op.startswith('v_cmp'):
            self.kind='valu'; self.dst=R[0]; self.src=sum(R[1:],[])
        elif op.startswith('v_permlane') and 'swap' in op:
            self.kind='valu'; self.dst=R[0]+R[1]; self.src=R[0]+R[1]
        elif op in ('v_readfirstlane_b32','v_readlane_b32'):
            self.kind='valu'; self.dst=R[0]; self.src=sum(R[1:],[])
        elif op.startswith('v_'):
            self.kind='valu'; self.dst=R[0]; self.src=sum(R[1:],[])
            if op.startswith('v_fmac') or op.startswith('v_dot2c') : self.src+=R[0]
            if op.startswith('v_add_co') or op.startswith('v_addc_co') or op.startswith('v_sub_co'):
                self.dst=R[0]+R[1]; self.src=sum(R[2:],[])
            if op.startswith('v_cndmask') and len(ops)==3: self.src+=[('s','vcc')]
        elif op.startswith('ds_'):
            self.kind='ds'
            if op.startswith('ds_read') or op.startswith('ds_bpermute') or op.startswith('ds_swizzle'):
                self.dst=R[0]; self.src=sum(R[1:],[])
            else:
                self.src=sum(R,[])
        elif op.startswith('buffer_') or op.startswith('global_'):
            self.kind='vmem'
            if op in ('buffer_wbl2','buffer_inv'):
                pass
            elif 'load' in op:
                if 'lds' in mods:
                    self.src=sum(R,[])+[('s','m0')]
                else:
                    self.dst=R[0]; self.src=sum(R[1:],[])
            elif 'atomic' in op:
                self.src=sum(R,[])
                if 'sc0' in mods: self.dst=R[0]
            else:
                self.src=sum(R,[])
        elif op.startswith('s_'):
            self.kind='salu'
            if op=='s_nop':
                self.nws=int(ops[0],0)+1
            elif op.startswith('s_cmp') or op.startswith('s_bitcmp'):
                self.src=sum(R,[]); self.dst=[('s','scc')]
            elif op in ('s_waitcnt','s_barrier','s_endpgm','s_sleep','s_setprio','s_branch') or op.startswith('s_cbranch'):
                pass
            elif op.startswith('s_load') or op.startswith('s_getreg') or op.startswith('s_getpc') or op.startswith('s_mem'):
                self.dst=R[0]; self.src=sum(R[1:],[])
            else:
                self.dst=R[0]; self.src=sum(R[1:],[])
        else:
            raise ValueError('unknown op '+text)

class Asm:
    def __init__(self):
        self.lines=[]
    def __call__(self, text):
        for ln in text.split('\n'):
            s=ln.strip()
            if not s: continue
            if s.startswith(';') or s.endswith(':') or s.startswith('.'):
                self.lines.append(s)
            else:
                self.lines.append(Ins(s))
    def comment(self,s): self.lines.append('; '+s)
    def label(self,n): self.lines.append(n+':')
    def count(self): return sum(1 for l in self.lines if isinstance(l,Ins))

    def fix_hazards(self, verbose=False):
        out=[]
        hist=[]
        pos=0
        nins=0
        def need(ins):
            req=0
            sset=set(ins.src); dset=set(ins.dst)
            for (p,ppos) in reversed(hist):
                d=pos-ppos
                if d>=20: break
                pd=set(p.dst)
                w=0
                if p.kind=='valu':
                    vw={r for r in pd if r[0] in 'va'}
                    sw={r for r in pd if r[0]=='s'}
                    if ins.kind=='mfma' and (vw & sset): w=max(w,2)
                    if p.op in TRANS and ins.kind in('valu',) and ins.op not in TRANS and (vw&sset): w=max(w,1)
                    if p.op in TRANS and ins.kind in('valu',) and ins.op in TRANS and (vw&sset): w=max(w,1)
                    if ins.kind=='valu' and 'permlane' in ins.op and (vw & sset): w=max(w,2)
                    if ins.op in('v_readfirstlane_b32','v_readlane_b32') and (vw & sset): w=max(w,1)
                    if ins.kind=='valu' and any(m.startswith('quad_perm') or m.startswith('row_') for m in ins.mods) and (vw&sset): w=max(w,2)
                    if p.op.startswith('v_dot'):
                        if ins.op!=p.op:
                            if vw & (sset|dset): w=max(w,3)
                        else:
                            ops_,_m=split_ops(ins.text.split(';')[0].strip().split(None,1)[1])
                            ab=set(regs_of(ops_[1])+regs_of(ops_[2]))
                            if vw & ab: w=max(w,3)
                    if sw & sset:
                        if ins.kind=='valu': w=max(w,2)
                        if ins.kind=='vmem': w=max(w,5)
                        if ins.kind=='salu': w=max(w,2)
                        if ins.kind=='ds': w=max(w,2)
                if p.kind=='mfma':
                    full = 8 if p.passes==4 else 12
                    if ins.kind=='mfma':
                        c=set(ins.srcC); ab=sset-c
                        if pd & ab: w=max(w,full)
                        if pd & c:
                            if not (p.dst==ins.srcC and p.passes==ins.passes): w=max(w, 6 if p.passes==4 else 10)
                        a_b=set(regs_of_ab(ins))
                        if pd & a_b: w=max(w,full)
                        if (pd & dset) and not (p.dst==ins.dst): w=max(w,full)
                    else:
                        if pd & (sset|dset): w=max(w,full)
                        if ins.kind=='valu' and (set(p.srcC)&dset): w=max(w, 3 if p.passes==4 else 7)
                if p.kind=='salu':
                    if ('s','m0') in pd and ins.kind=='vmem' and ('s','m0') in sset: w=max(w,1)
                if p.kind=='vmem' and ('store' in p.op) and (p.op.endswith('x4') or p.op.endswith('x3')):
                    data=set(regs_of(split_ops(p.text.split(';')[0].strip().split(None,1)[1])[0][0 if p.op.startswith('buffer') else 1]))
                    if ins.kind=='valu' and (data & dset): w=max(w,2)
                    elif ins.kind in('ds','vmem','mfma') and (data & dset): w=max(w,1)
                if w>d: req=max(req,w-d)
            return req
        def regs_of_ab(ins):
            t=ins.text.split(';')[0].strip().split(None,1)[1]
            ops,_=split_ops(t)
            return regs_of(ops[1])+regs_of(ops[2])
        added=0
        for l in self.lines:
            if isinstance(l,str):
                out.append(l); continue
            n=need(l)
            while n>0:
                k=min(n,16)
                nop=Ins('s_nop %d'%(k-1)); out.append(nop); pos+=k; hist.append((nop,pos)); n-=k; added+=1
            out.append(l); pos+=l.nws; hist.append((l,pos))
            if len(hist)>40: hist=hist[-40:]
        self.lines=out
        return added
    def text(self):
        o=[]
        for l in self.lines:
            if isinstance(l,str):
                o.append(l if (l.endswith(':') or l.startswith('.')) else '    '+l)
            else: o.append('    '+l.text)
        return '\n'.join(o)+'\n'

def vr(a,n=1): return f'v{a}' if n==1 else f'v[{a}:{a+n-1}]'
def ar(a,n=1): return f'a{a}' if n==1 else f'a[{a}:{a+n-1}]'
def sr(a,n=1): return f's{a}' if n==1 else f's[{a}:{a+n-1}]'

def magic_div(d, maxn):
    for sh in range(8,31):
        mul=-(-(1<<sh)//d)
        if mul*maxn>=(1<<32): continue
        if all((n*mul)>>sh==n//d for n in range(maxn+1)): return mul,sh
    raise ValueError

class VM:
    def __init__(self, a): self.a=a; self.q=[]
    def issue(self, text, tag):
        self.a(text); self.q.append(tag)
    def wait(self, *tags):
        last=-1
        for i,t in enumerate(self.q):
            if t in tags: last=i
        if last<0: return
        n=len(self.q)-1-last
        assert n<=63, n
        self.a(f's_waitcnt vmcnt({n})')
        self.q=self.q[last+1:]
    def wait_all(self):
        self.a('s_waitcnt vmcnt(0)'); self.q=[]
    def outstanding(self): return len(self.q)
```

```python
S=2048; D=640; DF=1728; H=32; DH=20
KB=1024
WQ=0
WQ_SZ=16*8*20*KB
WO=WQ+WQ_SZ
WO_SZ=8*20*5*KB
WG=WO+WO_SZ
WG_SZ=108*40*KB
WD=WG+WG_SZ
WD_SZ=8*54*5*KB
CSP=WD+WD_SZ
CSP_SZ=108*20*128
GRP=((CSP+CSP_SZ+4095)//4096)*4096
XT_SZ=8*40*KB
O_SZ=16*20*KB
H_SZ=16*54*KB
ST_SZ=8*256*8
G_XT2=[0, XT_SZ]
G_XT1=2*XT_SZ
G_O=[3*XT_SZ, 3*XT_SZ+O_SZ]
G_H=[3*XT_SZ+2*O_SZ, 3*XT_SZ+2*O_SZ+H_SZ]
_st=3*XT_SZ+2*O_SZ+2*H_SZ
G_ST0=_st
G_ST2=[_st+ST_SZ,_st+2*ST_SZ]
G_ST1=_st+3*ST_SZ
G_FLAG=_st+4*ST_SZ
GRP_SZ=((G_FLAG+256+4095)//4096)*4096
WS_USED=GRP+8*GRP_SZ
OOB=0x40000000
SLOT=20*KB
NRING=7
MISC=NRING*SLOT
L_CSG=MISC
L_STAT=MISC+1024
L_DUMMY=MISC+4096
LDS_TOTAL=160*KB
XR=65536
XR_SLOT=16*KB
XR_N=4
HALO=2*SLOT
STG=XR
SP=288
F_QA,F_QB,F_Z,F_KA,F_KB,F_VA,F_VB=0,48,96,112,160,208,248
def unit0(c16): return 7*c16 if c16<12 else 84+6*(c16-12)
def nunits(c16): return 7 if c16<12 else 6
if __name__=='__main__':
    print('WS_USED',WS_USED, 'GRP',GRP,'GRP_SZ',GRP_SZ)
```

```python
from asmlib import *
from layout import *
from regs import *

vACC=64
vX=136
vONES=168
vXA=172; vXB=173; vL16W=174; vPOLL=175; vPM=176; vSTO=177
vSD=180
sXS=84; sM0B=85; sWQ=86; sTMP=87; sTMP2=88; sSPIN=89; sHS=90; sPA=92

def spin_check(a, vm, mask_reg, first_loaded):
    lok=L('PK'); lloop=L('PL')
    if first_loaded:
        vm.wait('poll')
        a(f'v_and_b32 v{vT}, v{mask_reg}, v{vPOLL}')
        a(f'v_cmp_ne_u32 s[{sPA}:{sPA+1}], v{vT}, v{mask_reg}')
        a(f's_cmp_eq_u64 s[{sPA}:{sPA+1}], 0'); a(f's_cbranch_scc1 {lok}')
    a(f's_mov_b32 s{sSPIN}, 0')
    a.label(lloop)
    a(f's_add_u32 s{sSPIN}, s{sSPIN}, 1'); a(f's_cmp_gt_u32 s{sSPIN}, {SPIN_MAX}'); a('s_cbranch_scc1 L_END')
    a(f'v_lshlrev_b32 v{vT+1}, 2, v{vLANE}')
    a(f'buffer_load_dword v{vPOLL}, v{vT+1}, s[{S_DBG}:{S_DBG+3}], 0 offen sc1')
    a('s_waitcnt vmcnt(0)')
    a(f'v_and_b32 v{vT}, v{mask_reg}, v{vPOLL}')
    a(f'v_cmp_ne_u32 s[{sPA}:{sPA+1}], v{vT}, v{mask_reg}')
    a(f's_cmp_eq_u64 s[{sPA}:{sPA+1}], 0'); a(f's_cbranch_scc0 {lloop}')
    a.label(lok)

def p1_setup(a, layer):
    v=vT
    a(f'v_and_b32 v{v}, 15, v{vLANE}'); a(f'v_lshrrev_b32 v{v+1}, 4, v{vLANE}')
    if layer==0:
        a(f'v_mul_u32_u24 v{vXA}, 1280, v{v}'); a(f'v_lshlrev_b32 v{v+1}, 4, v{v+1}'); a(f'v_add_u32 v{vXA}, v{vXA}, v{v+1}')
        a(f'v_add_u32 v{vXB}, {16*1280}, v{vXA}')
        a(f's_lshl_b32 s{sXS}, s{sG}, 8'); a(f's_lshl_b32 s{sTMP}, s{sR}, 7'); a(f's_add_u32 s{sXS}, s{sXS}, s{sTMP}')
        a(f's_lshl_b32 s{sTMP}, s{sW}, 5'); a(f's_add_u32 s{sXS}, s{sXS}, s{sTMP}'); a(f's_mul_i32 s{sXS}, s{sXS}, 1280')
        a(f's_lshl_b32 s{sHS}, s{sG}, 8'); a(f's_lshl_b32 s{sTMP}, s{sR}, 7'); a(f's_add_u32 s{sHS}, s{sHS}, s{sTMP}')
        a(f's_cmp_eq_u32 s{sHS}, 0'); a(f's_cselect_b32 s{sTMP2}, 1, 0')
        a(f's_sub_u32 s{sHS}, s{sHS}, 16'); a(f's_mul_i32 s{sHS}, s{sHS}, 1280')
        a(f's_cmp_eq_u32 s{sTMP2}, 1'); a(f's_cselect_b32 s{sHS}, {OOB:#x}, s{sHS}')
    else:
        a(f'v_lshrrev_b32 v{v+2}, 1, v{v+1}'); a(f'v_lshlrev_b32 v{v+2}, 10, v{v+2}')
        a(f'v_and_b32 v{v+1}, 1, v{v+1}'); a(f'v_lshlrev_b32 v{v+1}, 9, v{v+1}')
        a(f'v_lshlrev_b32 v{vXA}, 4, v{v}'); a(f'v_add_u32 v{vXA}, v{vXA}, v{v+1}'); a(f'v_add_u32 v{vXA}, v{vXA}, v{v+2}')
        a(f'v_add_u32 v{vXB}, 256, v{vXA}')
        a(f's_lshl_b32 s{sXS}, s{sR}, 2'); a(f's_add_u32 s{sXS}, s{sXS}, s{sW}'); a(f's_mul_i32 s{sXS}, s{sXS}, 40960')
        a(f's_add_u32 s{sXS}, s{sXS}, s{sGB}'); a(f's_add_u32 s{sXS}, s{sXS}, {G_XT1}')
        a(f's_add_u32 s{sHS}, s{sGB}, {G_XT1+3*40960}')
        a(f's_sub_u32 s{sTMP}, s{sGB}, {GRP_SZ}'); a(f's_add_u32 s{sTMP}, s{sTMP}, {G_XT1+7*40960}')
        a(f's_cmp_eq_u32 s{sG}, 0'); a(f's_cselect_b32 s{sTMP}, {OOB:#x}, s{sTMP}')
        a(f's_cmp_eq_u32 s{sR}, 0'); a(f's_cselect_b32 s{sHS}, s{sTMP}, s{sHS}')
    a(f's_lshl_b32 s{sM0B}, s{sW}, 11'); a(f's_add_u32 s{sM0B}, s{sM0B}, {XR}')

def x_slot_dma(layer, n):
    out=[]
    srd_= S_X if layer==0 else S_WS
    step= 64 if layer==0 else 2048
    base=(n%XR_N)*XR_SLOT
    sc=SCL() if layer==1 else ''
    for half,(vo,mo) in enumerate(((vXA,0),(vXB,1024))):
        for tt in range(2):
            t=2*n+tt
            out.append((f's_add_u32 s{sTMP+tt}, s{sXS}, {step*t}',0)) if half==0 else None
            out.append((f's_add_u32 m0, s{sM0B}, {base+mo+tt*8192}',0))
            out.append((f'buffer_load_dwordx4 v{vo}, s[{srd_}:{srd_+3}], s{sTMP+tt} offen{sc} lds',1))
    return out

def emit_list(a, vm, lst, tag):
    for t,isv in lst:
        if isv: vm.issue(t,tag)
        else: a(t)

def p1_prefetch(a, vm, layer):
    for n in range(3): emit_list(a,vm,x_slot_dma(layer,n),('x',n))

def w_load(t):
    return [(f's_add_u32 s{sTMP2}, s{sWQ}, {t*1024}',0),
            (f'buffer_load_dwordx4 a[{t*4}:{t*4+3}], v{vL16}, s[{S_WS}:{S_WS+3}], s{sTMP2} offen',1),
            (f'buffer_load_dwordx4 a[{80+t*4}:{80+t*4+3}], v{vL16W}, s[{S_WS}:{S_WS+3}], s{sTMP2} offen',1)]

def poll_mask_full(a, layer):
    if layer==0:
        a(f'v_mov_b32 v{vPM}, 0x80808080')
    else:
        a(f's_sub_u32 s{sTMP}, s{sG}, 1')
        a(f's_and_b32 s{sTMP2}, s{sTMP}, 3'); a(f's_lshl_b32 s{sTMP2}, s{sTMP2}, 3'); a(f's_lshl_b32 s{sTMP2}, 0x40, s{sTMP2}')
        a(f's_cmp_eq_u32 s{sG}, 0'); a(f's_cselect_b32 s{sTMP2}, 0, s{sTMP2}')
        a(f's_cmp_lg_u32 s{sR}, 0'); a(f's_cselect_b32 s{sTMP2}, 0, s{sTMP2}')
        a(f's_lshr_b32 s{sTMP}, s{sTMP}, 2'); a(f's_and_b32 s{sTMP}, s{sTMP}, 1'); a(f's_add_u32 s{sTMP}, s{sTMP}, 0')
        a(f'v_and_b32 v{vT}, 1, v{vLANE}'); a(f'v_cmp_eq_u32 vcc, s{sTMP}, v{vT}')
        a(f'v_mov_b32 v{vT+1}, s{sTMP2}'); a(f'v_cndmask_b32 v{vPM}, 0, v{vT+1}, vcc')
        a(f'v_cmp_le_u32 vcc, 48, v{vLANE}'); a(f'v_cndmask_b32 v{vPM}, 0, v{vPM}, vcc')

def placement_check(a):
    a(f's_and_b32 s{sTMP}, s{sG}, 3'); a(f's_lshl_b32 s{sTMP}, s{sTMP}, 3')
    a(f'v_lshrrev_b32 v{vT}, s{sTMP}, v{vPOLL}'); a(f'v_and_b32 v{vT}, 15, v{vT}')
    a(f's_lshr_b32 s{sTMP2}, s{sG}, 2')
    a(f'v_and_b32 v{vT+1}, 1, v{vLANE}')
    a(f'v_cmp_eq_u32 s[{sPA}:{sPA+1}], s{sTMP2}, v{vT+1}')
    a(f'v_cmp_ne_u32 vcc, s{sXCC}, v{vT}')
    a(f's_and_b64 s[{sPA}:{sPA+1}], s[{sPA}:{sPA+1}], vcc')
    a(f's_cmp_lg_u64 s[{sPA}:{sPA+1}], 0'); a(f's_cselect_b32 s{sMODE}, 1, 0')
    if OPT.get('force_safe'): a(f's_mov_b32 s{sMODE}, 1')

def stats_loads(a, vm, layer):
    v=vT
    st = G_ST0 if layer==0 else G_ST1
    a(f's_mul_i32 s{sTMP}, s{sW}, 36'); a(f'v_add_u32 v{v}, s{sTMP}, v{vLANE}')
    a(f's_lshl_b32 s{sTMP}, s{sR}, 7'); a(f's_sub_u32 s{sTMP}, s{sTMP}, 16'); a(f's_lshl_b32 s{sTMP}, s{sTMP}, 3')
    a(f's_add_u32 s{sTMP}, s{sTMP}, s{sGB}'); a(f's_add_u32 s{sTMP}, s{sTMP}, {st}')
    a(f's_sub_u32 s{sTMP2}, s{sGB}, {GRP_SZ}'); a(f's_add_u32 s{sTMP2}, s{sTMP2}, {st+240*8}')
    a(f's_cmp_eq_u32 s{sG}, 0'); a(f's_cselect_b32 s{sTMP2}, {OOB:#x}, s{sTMP2}')
    a(f's_cmp_eq_u32 s{sR}, 0'); a(f's_cselect_b32 s{sTMP2}, s{sTMP2}, s{sTMP}')
    a(f'v_lshlrev_b32 v{v+1}, 3, v{v}')
    a(f'v_add_u32 v{v+2}, s{sTMP}, v{v+1}'); a(f'v_add_u32 v{v+3}, s{sTMP2}, v{v+1}')
    a(f'v_cmp_gt_u32 vcc, 16, v{v}'); a(f'v_cndmask_b32 v{vSTO}, v{v+2}, v{v+3}, vcc')
    a(f'v_mov_b32 v{v+3}, {OOB:#x}'); a(f'v_cmp_le_u32 vcc, 36, v{vLANE}'); a(f'v_cndmask_b32 v{vSTO}, v{vSTO}, v{v+3}, vcc')
    for c in range(8):
        a(f's_mov_b32 s{sTMP}, {c*2048}')
        vm.issue(f'buffer_load_dwordx2 v[{vSD+2*c}:{vSD+2*c+1}], v{vSTO}, s[{S_WS}:{S_WS+3}], s{sTMP} offen{SCL()}','st')

def ln_finalize(a, s, q, t):
    a(f'v_mov_b32 v{t}, {f2u(1.0/640):#x}')
    a(f'v_mul_f32 v{s}, v{s}, v{t}'); a(f'v_mul_f32 v{q}, v{q}, v{t}')
    a(f'v_fma_f32 v{q}, -v{s}, v{s}, v{q}'); a(f'v_max_f32 v{q}, 0, v{q}')
    if OPT.get('lnmimic',1):
        a(f'v_cvt_pk_bf16_f32 v{t}, v{s}, v{q}')
        a(f'v_lshlrev_b32 v{s}, 16, v{t}'); a(f'v_and_b32 v{q}, 0xffff0000, v{t}')
        a(f'v_add_f32 v{q}, {f2u(1e-5):#x}, v{q}')
        a(f'v_cvt_pk_bf16_f32 v{t}, v{q}, v{q}'); a(f'v_and_b32 v{q}, 0xffff0000, v{t}')
        a(f'v_sqrt_f32 v{q}, v{q}')
        a(f'v_cvt_pk_bf16_f32 v{t}, v{q}, v{q}'); a(f'v_and_b32 v{q}, 0xffff0000, v{t}')
        a(f'v_rcp_f32 v{q}, v{q}')
    else:
        a(f'v_add_f32 v{q}, {f2u(1e-5):#x}, v{q}'); a(f'v_rsq_f32 v{q}, v{q}')
    a(f'v_xor_b32 v{s}, 0x80000000, v{s}')

def stats_reduce(a):
    d=vSD
    for c in range(1,8):
        a(f'v_add_f32 v{d}, v{d}, v{d+2*c}'); a(f'v_add_f32 v{d+1}, v{d+1}, v{d+2*c+1}')
    ln_finalize(a,d,d+1,vT)
    a(f's_mul_i32 s{sTMP}, s{sW}, 36'); a(f'v_add_u32 v{vT}, s{sTMP}, v{vLANE}'); a(f'v_lshlrev_b32 v{vT}, 3, v{vT}')
    a(f'v_add_u32 v{vT}, {L_STAT}, v{vT}')
    set_exec(a,0xffffffff,0xf)
    a(f'ds_write_b64 v{vT}, v[{d}:{d+1}]')
    full_exec(a)

def halo_dma(layer):
    out=[]
    srd_= S_X if layer==0 else S_WS
    step= 64 if layer==0 else 2048
    vo = vXA if layer==0 else vXB
    sc=SCL() if layer==1 else ''
    out.append((f's_mul_i32 s{sTMP}, s{sW}, {5*step}',0)); out.append((f's_add_u32 s{sTMP}, s{sTMP}, s{sHS}',0))
    out.append((f's_mul_i32 s{sTMP2}, s{sW}, 5120',0));
    for i in range(5):
        out.append((f's_add_u32 m0, s{sTMP2}, {HALO+i*1024}',0))
        out.append((f'buffer_load_dwordx4 v{vo}, s[{srd_}:{srd_+3}], s{sTMP} offen{sc} lds',1))
        if i<4: out.append((f's_add_u32 s{sTMP}, s{sTMP}, {step}',0))
    return out

def p1_kloop(a, vm, layer, hooks={}):
    a.comment(f'==== P1 k-loop layer {layer} ====')
    if layer==0:
        a(f'v_add_u32 v{vL16W}, 20480, v{vL16}')
        a(f's_lshl_b32 s{sWQ}, s{sC16}, 3'); a(f's_lshl_b32 s{sTMP}, s{sW}, 1'); a(f's_add_u32 s{sWQ}, s{sWQ}, s{sTMP}'); a(f's_mul_i32 s{sWQ}, s{sWQ}, 20480')
        if WQ: a(f's_add_u32 s{sWQ}, s{sWQ}, {WQ}')
        for i in range(4): a(f'v_mov_b32 v{vONES+i}, 0x3f803f80')
        a(f'v_mov_b32 v{vT+2}, 0x80808080'); a(f'v_cmp_gt_u32 vcc, 20, v{vLANE}'); a(f'v_cndmask_b32 v{vPM}, 0, v{vT+2}, vcc')
        spin_check(a,vm,vPM,False)
        vm.q=[]
        for t in range(6): emit_list(a,vm,w_load(t),('W',t))
    poll_mask_full(a,layer)
    vm.wait(('x',0)); a('s_barrier')
    def rd(t,rb):
        n=t//2; tt=t%2
        return f'ds_read_b128 v[{vX+4*rb}:{vX+4*rb+3}], v{vL16b} offset:{XR-65536+(n%XR_N)*XR_SLOT+tt*8192+rb*1024}'
    for rb in range(8): a(rd(0,rb))
    for t in range(20):
        fill=[]
        if t%2==1 and t<19:
            n1=(t+1)//2
            vm.wait(('x',n1)); a('s_barrier')
            if n1+2<10:
                for tx,isv in x_slot_dma(layer,n1+2): fill.append((tx,('x',n1+2) if isv else None))
        if layer==0 and t+6<20:
            for tx,isv in w_load(t+6): fill.append((tx,('W',t+6) if isv else None))
        if t==8:
            fill.append((f'v_lshlrev_b32 v{vT+4}, 2, v{vLANE}',None))
            fill.append((f'buffer_load_dword v{vPOLL}, v{vT+4}, s[{S_DBG}:{S_DBG+3}], 0 offen sc1','poll'))
        if t==12:
            spin_check(a,vm,vPM,True)
            if layer==0: placement_check(a)
            for tx,isv in halo_dma(layer): fill.append((tx,'halo' if isv else None))
        if t==14:
            stats_loads(a,vm,layer)
        if t in hooks: hooks[t](a,vm)
        if layer==0:
            vm.wait(('W',t))
            for jb in range(2):
                c = '0' if t==0 else f'v[{vCSQ+4*jb}:{vCSQ+4*jb+3}]'
                a(f'v_mfma_f32_16x16x32_bf16 v[{vCSQ+4*jb}:{vCSQ+4*jb+3}], a[{80*jb+4*t}:{80*jb+4*t+3}], v[{vONES}:{vONES+3}], {c}')
        nf=len(fill); fi=0
        for rb in range(8):
            if rb%2==0:
                a(f's_waitcnt lgkmcnt({6 if t<19 else 6-rb})')
            for jb in range(2):
                acc=vACC+8*rb+4*jb
                c='0' if t==0 else f'v[{acc}:{acc+3}]'
                a(f'v_mfma_f32_16x16x32_bf16 v[{acc}:{acc+3}], a[{80*jb+4*t}:{80*jb+4*t+3}], v[{vX+4*rb}:{vX+4*rb+3}], {c}')
            if t<19: a(rd(t+1,rb))
            k=-(-nf*(rb+1)//8)
            while fi<k:
                tx,tag=fill[fi]; fi+=1
                if tag is None: a(tx)
                else: vm.issue(tx,tag)

vSM=40
vE=58
sO=81

def stg_addr_setup(a):
    v=vT
    for jb in range(2):
        a(f'v_lshrrev_b32 v{v}, 4, v{vLANE}'); a(f's_lshl_b32 s{sTMP}, s{sW}, 3'); a(f's_add_u32 s{sTMP}, s{sTMP}, {4*jb}')
        a(f'v_add_u32 v{v}, s{sTMP}, v{v}')
        a(f'v_mul_u32_u24 v{v+1}, 26, v{v}'); a(f'v_lshrrev_b32 v{v+1}, 8, v{v+1}')
        a(f'v_mul_u32_u24 v{v+2}, 10, v{v+1}'); a(f'v_sub_u32 v{v+2}, v{v}, v{v+2}')
        a(f'v_cmp_le_u32 vcc, 5, v{v+2}'); a(f'v_cndmask_b32 v{v+3}, 0, 1, vcc')
        a(f'v_lshlrev_b32 v{v+4}, 3, v{v+2}')
        a(f'v_lshlrev_b32 v{v+3}, 3, v{v+3}'); a(f'v_add_u32 v{v+3}, v{v+3}, v{v+4}')
        a(f'v_add_u32 v{v+5}, {F_KA}, v{v+3}')
        a(f'v_add_u32 v{v+4}, {F_VA}, v{v+4}')
        a(f'v_cmp_eq_u32 vcc, 1, v{v+1}'); a(f'v_cndmask_b32 v{v+3}, v{v+3}, v{v+5}, vcc')
        a(f'v_cmp_eq_u32 vcc, 2, v{v+1}'); a(f'v_cndmask_b32 v{v+3}, v{v+3}, v{v+4}, vcc')
        a(f'v_mov_b32 v{v+4}, 40'); a(f'v_cmp_eq_u32 vcc, 30, v{v}'); a(f'v_cndmask_b32 v{v+3}, v{v+3}, v{v+4}, vcc')
        a(f'v_mov_b32 v{v+4}, 88'); a(f'v_cmp_eq_u32 vcc, 31, v{v}'); a(f'v_cndmask_b32 v{v+3}, v{v+3}, v{v+4}, vcc')
        a(f'v_and_b32 v{v+4}, 15, v{vLANE}'); a(f'v_mul_u32_u24 v{v+4}, {SP}, v{v+4}')
        a(f'v_add_u32 v{v+3}, v{v+3}, v{v+4}'); a(f'v_add_u32 v{vSTG0+jb}, {STG}, v{v+3}')
    assert all((s*26)>>8==s//10 for s in range(32))

def epi_rb(rb):
    out=[]
    row0 = 0 if rb==8 else 16+16*rb
    sm=vSM+2*rb
    for jb in range(2):
        acc=vACC+8*rb+4*jb
        for h in range(2):
            p=acc+2*h; cs=vCSQ+4*jb+2*h
            out.append(f'v_pk_fma_f32 v[{p}:{p+1}], v[{cs}:{cs+1}], v[{sm}:{sm+1}], v[{p}:{p+1}] op_sel_hi:[1,0,1]')
        for h in range(2):
            p=acc+2*h
            out.append(f'v_pk_mul_f32 v[{p}:{p+1}], v[{p}:{p+1}], v[{sm}:{sm+1}] op_sel:[0,1] op_sel_hi:[1,1]')
        e=vE+2*jb
        out.append(f'v_cvt_pk_bf16_f32 v{e}, v{acc}, v{acc+1}')
        out.append(f'v_cvt_pk_bf16_f32 v{e+1}, v{acc+2}, v{acc+3}')
        out.append(f'ds_write_b64 v{vSTG0+jb}, v[{e}:{e+1}] offset:{row0*SP}')
    return out

def p1_tail(a, vm):
    a.comment('==== P1 tail ====')
    vm.wait('st'); stats_reduce(a)
    vm.wait_all()
    a('s_waitcnt lgkmcnt(0)'); a('s_barrier')
    v=vT
    a(f's_mul_i32 s{sTMP}, s{sW}, 36'); a(f'v_add_u32 v{v}, s{sTMP}, v{vLANE}'); a(f'v_mul_u32_u24 v{v}, {SP}, v{v}'); a(f'v_add_u32 v{v}, {STG}, v{v}')
    for i in range(4): a(f'v_mov_b32 v{v+2+i}, 0')
    set_exec(a,0xffffffff,0xf)
    a(f'ds_write_b64 v{v}, v[{v+2}:{v+3}] offset:{F_KA+40}'); a(f'ds_write_b64 v{v}, v[{v+2}:{v+3}] offset:{F_KB+40}')
    a(f'ds_write_b128 v{v}, v[{v+2}:{v+5}] offset:{F_Z}')
    full_exec(a)
    a(f'v_and_b32 v{v}, 15, v{vLANE}'); a(f'v_lshlrev_b32 v{v}, 3, v{v}'); a(f'v_add_u32 v{v}, {L_STAT}, v{v}')
    for rb in range(9):
        row0 = 0 if rb==8 else 16+16*rb
        a(f'ds_read_b64 v[{vSM+2*rb}:{vSM+2*rb+1}], v{v} offset:{row0*8}')
    def rdh(t): return f'ds_read_b128 v[{vX+4*(t%8)}:{vX+4*(t%8)+3}], v{vL16} offset:{HALO+t*1024}'
    for t in range(8): a(rdh(t))
    a('s_waitcnt lgkmcnt(8)')
    fill=[]
    for rb in range(8): fill+=epi_rb(rb)
    fi=0; nf=len(fill)
    for t in range(20):
        later=min(7,19-t)
        a(f's_waitcnt lgkmcnt({later})') if fi==0 else a('s_waitcnt lgkmcnt(%d)'%min(later,15))
        for jb in range(2):
            acc=vACC+64+4*jb
            c='0' if t==0 else f'v[{acc}:{acc+3}]'
            a(f'v_mfma_f32_16x16x32_bf16 v[{acc}:{acc+3}], a[{80*jb+4*t}:{80*jb+4*t+3}], v[{vX+4*(t%8)}:{vX+4*(t%8)+3}], {c}')
        if t+8<20: a(rdh(t+8))
        k=-(-nf*(t+1)//20)
        while fi<k: a(fill[fi]); fi+=1
    for i in epi_rb(8): a(i)
    a('s_waitcnt lgkmcnt(0)'); a('s_barrier')

vQA=24; vQB=25; vK=26; vV=27; vMB=28
vMS=36
vAT=64
CEXP=f2u(20**-0.5*1.4426950408889634)

def attn_setup(a):
    v=60
    a(f'v_and_b32 v{v}, 15, v{vLANE}'); a(f'v_lshrrev_b32 v{v+1}, 4, v{vLANE}')
    a(f's_mul_i32 s{sTMP}, s{sW}, {32*SP}'); a(f's_add_u32 s{sTMP}, s{sTMP}, {STG}')
    a(f'v_mul_u32_u24 v{v+2}, {SP}, v{v}'); a(f'v_add_u32 v{v+2}, s{sTMP}, v{v+2}')
    a(f'v_lshlrev_b32 v{v+3}, 4, v{v+1}')
    a(f'v_add_u32 v{vK}, v{v+2}, v{v+3}')
    a(f'v_cmp_eq_u32 vcc, 3, v{v+1}')
    a(f'v_add_u32 v{vQA}, {F_Z}, v{v+2}'); a(f'v_cndmask_b32 v{vQA}, v{vK}, v{vQA}, vcc')
    a(f'v_add_u32 v{vQB}, {F_QB}, v{vK}'); a(f'v_add_u32 v{v+3}, {F_Z}, v{v+2}'); a(f'v_cndmask_b32 v{vQB}, v{vQB}, v{v+3}, vcc')
    a(f'v_bfe_u32 v{v+2}, v{vLANE}, 2, 2'); a(f'v_lshlrev_b32 v{v+3}, 2, v{v+1}'); a(f'v_add_u32 v{v+2}, v{v+2}, v{v+3}')
    a(f'v_mul_u32_u24 v{v+2}, {SP}, v{v+2}'); a(f'v_and_b32 v{v+3}, 3, v{vLANE}'); a(f'v_lshlrev_b32 v{v+3}, 3, v{v+3}')
    a(f'v_add_u32 v{v+2}, v{v+2}, v{v+3}'); a(f'v_add_u32 v{vV}, s{sTMP}, v{v+2}')
    a(f'v_lshlrev_b32 v{v+1}, 2, v{v+1}'); a(f'v_sub_u32 v{v}, v{v}, v{v+1}')
    a(f'v_mov_b32 v{v+3}, 0xf149f2ca')
    for kb in range(2):
        for i in range(4):
            a(f'v_add_u32 v{v+1}, {16-16*kb-i}, v{v}')
            a(f'v_and_b32 v{v+2}, 0xfffffff1, v{v+1}')
            a(f'v_cmp_eq_u32 vcc, 0, v{v+2}')
            a(f'v_cndmask_b32 v{vMB+4*kb+i}, v{v+3}, 0, vcc')
    a(f's_or_b32 s{sTMP}, s{sG}, s{sR}'); a(f's_or_b32 s{sTMP}, s{sTMP}, s{sW}'); a(f's_cmp_eq_u32 s{sTMP}, 0')
    a(f's_cselect_b64 vcc, -1, 0')
    for i in range(4): a(f'v_cndmask_b32 v{vMS+i}, v{vMB+i}, v{v+3}, vcc')

def attention(a, vm):
    a.comment('==== attention ====')
    attn_setup(a)
    def R(uu,hd): return vAT+48*(2*uu+hd)
    units=[(uu,hd) for uu in range(2) for hd in range(2)]
    for uu,hd in units:
        B=R(uu,hd); fk=F_KA if hd==0 else F_KB; fv=F_VA if hd==0 else F_VB
        a(f'ds_read_b128 v[{B}:{B+3}], v{vQA if hd==0 else vQB} offset:{(16+16*uu)*SP}')
        a(f'ds_read_b128 v[{B+4}:{B+7}], v{vK} offset:{(16*uu)*SP+fk}')
        a(f'ds_read_b128 v[{B+8}:{B+11}], v{vK} offset:{(16*uu+16)*SP+fk}')
    for uu,hd in units:
        B=R(uu,hd); fv=F_VA if hd==0 else F_VB
        for db in range(2):
            a(f'ds_read_b64_tr_b16 v[{B+12+4*db}:{B+13+4*db}], v{vV} offset:{(16*uu)*SP+fv+32*db}')
            a(f'ds_read_b64_tr_b16 v[{B+14+4*db}:{B+15+4*db}], v{vV} offset:{(16*uu+16)*SP+fv+32*db}')
    a(f'v_mov_b32 v56, {CEXP:#x}')
    for i in range(4): a(f'v_mov_b32 v{52+i}, 0x3f803f80')
    a('s_waitcnt lgkmcnt(15)')
    for uu,hd in units:
        B=R(uu,hd)
        m0 = vMS if uu==0 else vMB
        a(f'v_mfma_f32_16x16x32_bf16 v[{B+20}:{B+23}], v[{B+4}:{B+7}], v[{B}:{B+3}], v[{m0}:{m0+3}]')
        a(f'v_mfma_f32_16x16x32_bf16 v[{B+24}:{B+27}], v[{B+8}:{B+11}], v[{B}:{B+3}], v[{vMB+4}:{vMB+7}]')
    for uu,hd in units:
        B=R(uu,hd); s=B+20; t=B+44
        a(f'v_max3_f32 v{t}, v{s}, v{s+1}, v{s+2}'); a(f'v_max3_f32 v{t+1}, v{s+3}, v{s+4}, v{s+5}')
        a(f'v_max3_f32 v{t}, v{t}, v{s+6}, v{s+7}'); a(f'v_max_f32 v{t}, v{t}, v{t+1}')
    for sw in ('v_permlane32_swap_b32','v_permlane16_swap_b32'):
        for uu,hd in units:
            t=R(uu,hd)+44; a(f'v_mov_b32 v{t+1}, v{t}')
        for uu,hd in units:
            t=R(uu,hd)+44; a(f'{sw} v{t}, v{t+1}')
        for uu,hd in units:
            t=R(uu,hd)+44; a(f'v_max_f32 v{t}, v{t}, v{t+1}')
    for uu,hd in units:
        B=R(uu,hd); s=B+20; t=B+44
        a(f'v_mul_f32 v{t}, v56, v{t}')
        for h in range(4):
            a(f'v_pk_fma_f32 v[{s+2*h}:{s+2*h+1}], v[{s+2*h}:{s+2*h+1}], v[56:57], v[{t}:{t+1}] op_sel_hi:[1,0,0] neg_lo:[0,0,1] neg_hi:[0,0,1]')
    for uu,hd in units:
        s=R(uu,hd)+20
        for i in range(8): a(f'v_exp_f32 v{s+i}, v{s+i}')
    for uu,hd in units:
        B=R(uu,hd); s=B+20
        for h in range(4): a(f'v_cvt_pk_bf16_f32 v{B+28+h}, v{s+2*h}, v{s+2*h+1}')
    a('s_waitcnt lgkmcnt(0)')
    for uu,hd in units:
        B=R(uu,hd)
        a(f'v_mfma_f32_16x16x32_bf16 v[{B+40}:{B+43}], v[52:55], v[{B+28}:{B+31}], 0')
        a(f'v_mfma_f32_16x16x32_bf16 v[{B+32}:{B+35}], v[{B+12}:{B+15}], v[{B+28}:{B+31}], 0')
        a(f'v_mfma_f32_16x16x32_bf16 v[{B+36}:{B+39}], v[{B+16}:{B+19}], v[{B+28}:{B+31}], 0')
    for uu,hd in units:
        B=R(uu,hd)
        a(f'v_rcp_f32 v{B+44}, v{B+40}')
    for uu,hd in units:
        B=R(uu,hd)
        for p in (32,34,36,38):
            a(f'v_pk_mul_f32 v[{B+p}:{B+p+1}], v[{B+p}:{B+p+1}], v[{B+44}:{B+45}] op_sel_hi:[1,0]')
    vm_main=[40,44]; vm_tail=[48,60]
    for uu in range(2):
        A=R(uu,0); Bq=R(uu,1); m=vm_main[uu]; tl=vm_tail[uu]
        a(f'v_cvt_pk_bf16_f32 v{m}, v{A+32}, v{A+33}'); a(f'v_cvt_pk_bf16_f32 v{m+1}, v{A+34}, v{A+35}')
        a(f'v_cvt_pk_bf16_f32 v{m+2}, v{Bq+32}, v{Bq+33}'); a(f'v_cvt_pk_bf16_f32 v{m+3}, v{Bq+34}, v{Bq+35}')
        a(f'v_cvt_pk_bf16_f32 v{tl}, v{A+36}, v{A+37}'); a(f'v_cvt_pk_bf16_f32 v{tl+1}, v{A+38}, v{A+39}')
        a(f'v_cvt_pk_bf16_f32 v{tl+2}, v{Bq+36}, v{Bq+37}'); a(f'v_cvt_pk_bf16_f32 v{tl+3}, v{Bq+38}, v{Bq+39}')
    a(f's_lshl_b32 s{sTMP}, s{sR}, 3'); a(f's_lshl_b32 s{sTMP2}, s{sW}, 1'); a(f's_add_u32 s{sTMP}, s{sTMP}, s{sTMP2}')
    a(f's_mul_i32 s{sTMP}, s{sTMP}, 20480'); a(f's_add_u32 s{sTMP}, s{sTMP}, s{sO}')
    a(f's_lshl_b32 s{sTMP2}, s{sC16}, 10'); a(f's_add_u32 s{sPA}, s{sTMP}, s{sTMP2}')
    a(f's_lshr_b32 s{sTMP2}, s{sC16}, 2'); a(f's_add_u32 s{sTMP2}, s{sTMP2}, 16'); a(f's_lshl_b32 s{sTMP2}, s{sTMP2}, 10'); a(f's_add_u32 s{sTMP}, s{sTMP}, s{sTMP2}')
    a(f's_and_b32 s{sTMP2}, s{sC16}, 3'); a(f's_lshl_b32 s{sTMP2}, s{sTMP2}, 8'); a(f's_add_u32 s{sTMP}, s{sTMP}, s{sTMP2}')
    vm.issue(f'buffer_store_dwordx4 v[40:43], v{vL16}, s[{S_WS}:{S_WS+3}], s{sPA} offen','ost')
    a(f's_add_u32 s{sPA}, s{sPA}, 20480')
    vm.issue(f'buffer_store_dwordx4 v[44:47], v{vL16}, s[{S_WS}:{S_WS+3}], s{sPA} offen','ost')
    set_exec(a,0xffff,0)
    vm.issue(f'buffer_store_dwordx4 v[48:51], v{vL16}, s[{S_WS}:{S_WS+3}], s{sTMP} offen','ost')
    a(f's_add_u32 s{sTMP}, s{sTMP}, 20480')
    vm.issue(f'buffer_store_dwordx4 v[60:63], v{vL16}, s[{S_WS}:{S_WS+3}], s{sTMP} offen','ost')
    full_exec(a)
```

```python
from asmlib import *
from layout import *
from regs import *
import p1
from p1 import sTMP, sTMP2, sSPIN, sPA, ln_finalize

sWoS=60; sGS=61; sG7=62; sDS=63; sD13=64; sM5=65; sPH=66
sXT2=67; sST2=68; sH=69; sHst=70; sU0=71
sFLA=72
sE0=73; sE1=74; sE2=75
sO=p1.sO

def lds_base(addr):
    if addr<65536: return vL16, addr
    if addr<131072: return vL16b, addr-65536
    return vL16c, addr-131072

def stream_setup(a):
    a(f's_mul_i32 s{sM5}, s{sW}, 5120')
    a(f's_mul_i32 s{sWoS}, s{sC8}, {100*KB}'); a(f's_add_u32 s{sWoS}, s{sWoS}, {WO}'); a(f's_add_u32 s{sWoS}, s{sWoS}, s{sM5}')
    a(f's_mul_i32 s{sU0}, s{sC16}, 7'); a(f's_mul_i32 s{sTMP}, s{sC16}, 6'); a(f's_add_u32 s{sTMP}, s{sTMP}, 12')
    a(f's_cmp_lt_u32 s{sC16}, 12'); a(f's_cselect_b32 s{sU0}, s{sU0}, s{sTMP}')
    a(f's_mul_i32 s{sGS}, s{sU0}, {40*KB}'); a(f's_add_u32 s{sGS}, s{sGS}, {WG}'); a(f's_add_u32 s{sGS}, s{sGS}, s{sM5}')
    a(f's_add_u32 s{sG7}, s{sGS}, {12*SLOT}'); a(f's_cmp_lt_u32 s{sC16}, 12'); a(f's_cselect_b32 s{sG7}, s{sG7}, {OOB:#x}')
    a(f's_mul_i32 s{sDS}, s{sC8}, {270*KB}'); a(f's_add_u32 s{sDS}, s{sDS}, {WD}'); a(f's_add_u32 s{sDS}, s{sDS}, s{sM5}')
    a(f's_add_u32 s{sD13}, s{sDS}, {13*SLOT}'); a(f's_cmp_lt_u32 s{sW}, 2'); a(f's_cselect_b32 s{sD13}, s{sD13}, {OOB:#x}')
    a(f's_add_u32 s{sFLA}, s{sGB}, {G_FLAG}')
    a(f's_mov_b32 s{sPH}, 0')

def layer_setup(a):
    def sel(dst,arr):
        a(f's_mul_i32 s{dst}, s{sLAYER}, {arr[1]-arr[0]}'); a(f's_add_u32 s{dst}, s{dst}, {arr[0]}'); a(f's_add_u32 s{dst}, s{dst}, s{sGB}')
    sel(sO,G_O); sel(sXT2,G_XT2); sel(sST2,G_ST2); sel(sH,G_H)

def ring_issue(n):
    pos=(n%NRING)*SLOT
    out=[]
    if n<5: out.append((f's_add_u32 s{sE0}, s{sWoS}, {n*SLOT}',0))
    elif n<17: out.append((f's_add_u32 s{sE0}, s{sGS}, {(n-5)*SLOT}',0))
    elif n<19: out.append((f's_add_u32 s{sE0}, s{sG7}, {(n-17)*SLOT}',0))
    elif n<32: out.append((f's_add_u32 s{sE0}, s{sDS}, {(n-19)*SLOT}',0))
    else: out.append((f's_mov_b32 s{sE0}, s{sD13}',0))
    out.append((f's_add_u32 m0, s{sM5}, {pos}',0))
    for i in range(4):
        out.append((f'buffer_load_dwordx4 v{vL16}, s[{S_WS}:{S_WS+3}], s{sE0} offen offset:{i*1024} lds',1))
    out.append((f's_add_u32 m0, s{sM5}, {pos+4096}',0)); out.append((f's_add_u32 s{sE0}, s{sE0}, 4096',0))
    out.append((f'buffer_load_dwordx4 v{vL16}, s[{S_WS}:{S_WS+3}], s{sE0} offen lds',1))
    return out
def ring_emit(a,vm,n):
    for t,isv in ring_issue(n):
        if isv: vm.issue(t,('ring',n))
        else: a(t)

def xbar(a, vm, held, halo=False):
    a.comment('==== xbar ====')
    vm.wait_all()
    a('s_waitcnt lgkmcnt(0)')
    a('s_barrier')
    a(f's_add_u32 s{sPH}, s{sPH}, 1')
    lw0=L('XW0'); lj=L('XJ'); lsafe=L('XS'); lpoll=L('XP'); lst=L('XST')
    a(f's_cmp_eq_u32 s{sW}, 0'); a(f's_cbranch_scc1 {lw0}')
    q0=list(vm.q)
    for n in held: ring_emit(a,vm,n)
    q1=list(vm.q); vm.q=q0
    a(f's_branch {lj}')
    a.label(lw0)
    v=vT
    if halo:
        lh=L('XH')
        a(f's_cmp_eq_u32 s{sQ}, 3'); a(f's_cbranch_scc0 {lh}')
        a(f's_or_b32 s{sE0}, s{sXCC}, 0xc0'); a(f'v_mov_b32 v{v}, s{sE0}'); a(f'v_mov_b32 v{v+1}, s2')
        set_exec(a,1,0)
        a(f'buffer_store_byte v{v}, v{v+1}, s[{S_DBG}:{S_DBG+3}], 0 offen sc1')
        full_exec(a)
        a.label(lh)
    a(f'v_mov_b32 v{v}, s{sPH}'); a(f's_lshl_b32 s{sE0}, s{sRHO}, 2'); a(f's_add_u32 s{sE0}, s{sE0}, s{sFLA}'); a(f'v_mov_b32 v{v+1}, 0')
    a(f's_cmp_eq_u32 s{sMODE}, 0'); a(f's_cbranch_scc0 {lsafe}')
    set_exec(a,1,0)
    a(f'buffer_store_dword v{v}, v{v+1}, s[{S_WS}:{S_WS+3}], s{sE0} offen')
    full_exec(a)
    a(f's_branch {lst}')
    a.label(lsafe)
    a('buffer_wbl2 sc1'); a('s_waitcnt vmcnt(0)')
    set_exec(a,1,0)
    a(f'buffer_store_dword v{v}, v{v+1}, s[{S_WS}:{S_WS+3}], s{sE0} offen sc1')
    full_exec(a)
    a.label(lst)
    a(f'v_and_b32 v{v+1}, 31, v{vLANE}'); a(f'v_lshlrev_b32 v{v+1}, 2, v{v+1}')
    a(f's_mov_b32 s{sSPIN}, 0')
    a.label(lpoll)
    a(f's_add_u32 s{sSPIN}, s{sSPIN}, 1'); a(f's_cmp_gt_u32 s{sSPIN}, {SPIN_MAX}'); a('s_cbranch_scc1 L_ABORT')
    a(f'buffer_load_dword v{v+2}, v{v+1}, s[{S_WS}:{S_WS+3}], s{sFLA} offen sc1')
    a('s_waitcnt vmcnt(0)')
    a(f'v_cmp_gt_u32 s[{sPA}:{sPA+1}], s{sPH}, v{v+2}')
    a(f's_cmp_eq_u64 s[{sPA}:{sPA+1}], 0'); a(f's_cbranch_scc0 {lpoll}')
    for n in held: ring_emit(a,vm,n)
    assert vm.q==q1
    a.label(lj)
    a('s_barrier')

vACC2=40
vWF=64
def gemm80(a, vm, T, n0, breg, btag, issue_map, extra=None):
    NF=T*5; D=10
    def rd(f):
        t,b=divmod(f,5); n=n0+t//4
        addr=(n%NRING)*SLOT+((t%4)*5+b)*1024
        br,off=lds_base(addr)
        return f'ds_read_b128 v[{vWF+4*(f%D)}:{vWF+4*(f%D)+3}], v{br} offset:{off}'
    fill=[]
    def beta(n):
        vm.wait(('ring',n)); a('s_barrier')
        for m in issue_map.get(n,[]):
            for tx,isv in ring_issue(m): fill.append((tx,('ring',m) if isv else None))
    beta(n0)
    nread=0
    for f in range(min(D,NF)): a(rd(f)); nread+=1
    for f in range(NF):
        t,b=divmod(f,5)
        if b==0:
            if extra and t in extra: fill.extend(extra[t])
            vm.wait(btag(t))
        later=nread-1-f
        if b in (0,2,4) or later<2:
            need=f if (b==4 or later<2) else f+1
            a(f's_waitcnt lgkmcnt({max(0,nread-1-need)})')
        acc=vACC2+4*b
        c='0' if t==0 else f'v[{acc}:{acc+3}]'
        a(f'v_mfma_f32_16x16x32_bf16 v[{acc}:{acc+3}], v[{vWF+4*(f%D)}:{vWF+4*(f%D)+3}], {breg(t)}, {c}')
        if nread<NF:
            tn=nread//5
            if nread%20==0: beta(n0+tn//4)
            a(rd(nread)); nread+=1
        for _ in range(2):
            if fill:
                tx,tag=fill.pop(0)
                if tag is None: a(tx)
                else: vm.issue(tx,tag)
    while fill:
        tx,tag=fill.pop(0)
        if tag is None: a(tx)
        else: vm.issue(tx,tag)

vXO=104
def res_update(a):
    t=vT
    for b in range(5):
        for h in range(2):
            r=vRES+2*b+h; p=vACC2+4*b+2*h
            a(f'v_lshlrev_b32 v{t}, 16, v{r}'); a(f'v_and_b32 v{t+1}, 0xffff0000, v{r}')
            a(f'v_pk_add_f32 v[{p}:{p+1}], v[{p}:{p+1}], v[{t}:{t+1}]')
            a(f'v_cvt_pk_bf16_f32 v{r}, v{p}, v{p+1}')

def xt_store(a, vm, sXT, sST, sc1=False):
    import gen
    sc=' sc1' if sc1 else ''
    v=vT
    a(f'v_lshrrev_b32 v{v}, 4, v{vLANE}'); a(f'v_and_b32 v{v+1}, 15, v{vLANE}')
    a(f'v_lshrrev_b32 v{v+2}, 1, v{v}'); a(f'v_lshlrev_b32 v{v+2}, 9, v{v+2}'); a(f'v_and_b32 v{v}, 1, v{v}'); a(f'v_lshlrev_b32 v{v}, 3, v{v}')
    a(f'v_lshlrev_b32 v{vXO}, 4, v{v+1}'); a(f'v_add_u32 v{vXO}, v{vXO}, v{v+2}'); a(f'v_add_u32 v{vXO}, v{vXO}, v{v}')
    a(f's_lshl_b32 s{sE0}, s{sQ}, 1'); a(f's_lshr_b32 s{sE1}, s{sW}, 1'); a(f's_add_u32 s{sE0}, s{sE0}, s{sE1}'); a(f's_mul_i32 s{sE0}, s{sE0}, 40960')
    a(f's_mul_i32 s{sE1}, s{sC8}, 5120'); a(f's_add_u32 s{sE0}, s{sE0}, s{sE1}')
    a(f's_and_b32 s{sE1}, s{sW}, 1'); a(f's_lshl_b32 s{sE1}, s{sE1}, 8'); a(f's_add_u32 s{sE0}, s{sE0}, s{sE1}'); a(f's_add_u32 s{sE0}, s{sE0}, s{sXT}')
    for b in range(4):
        vm.issue(f'buffer_store_dwordx2 v[{vRES+2*b}:{vRES+2*b+1}], v{vXO}, s[{S_WS}:{S_WS+3}], s{sE0} offen offset:{b*1024}{sc}','xst')
    a(f's_add_u32 s{sE0}, s{sE0}, 4096')
    vm.issue(f'buffer_store_dwordx2 v[{vRES+8}:{vRES+9}], v{vXO}, s[{S_WS}:{S_WS+3}], s{sE0} offen{sc}','xst')
    t=vT+8
    gen.stats_from_res(a,t)
    a(f'v_and_b32 v{vT}, 15, v{vLANE}'); a(f'v_lshlrev_b32 v{vT}, 3, v{vT}')
    a(f's_lshl_b32 s{sE0}, s{sC8}, 11'); a(f's_lshl_b32 s{sE1}, s{sQ}, 9'); a(f's_add_u32 s{sE0}, s{sE0}, s{sE1}')
    a(f's_lshl_b32 s{sE1}, s{sW}, 7'); a(f's_add_u32 s{sE0}, s{sE0}, s{sE1}'); a(f's_add_u32 s{sE0}, s{sE0}, s{sST}')
    set_exec(a,0xffff,0)
    vm.issue(f'buffer_store_dwordx2 v[{t}:{t+1}], v{vT}, s[{S_WS}:{S_WS+3}], s{sE0} offen{sc}','xst')
    full_exec(a)

def p2(a, vm):
    a.comment('==== P2 ====')
    a(f's_lshl_b32 s{sE0}, s{sQ}, 2'); a(f's_add_u32 s{sE0}, s{sE0}, s{sW}'); a(f's_mul_i32 s{sE0}, s{sE0}, 20480'); a(f's_add_u32 s{sE0}, s{sE0}, s{sO}')
    for t in range(20):
        if t%4==0 and t>0: a(f's_add_u32 s{sE0}, s{sE0}, 4096')
        vm.issue(f'buffer_load_dwordx4 a[{160+4*t}:{163+4*t}], v{vL16}, s[{S_WS}:{S_WS+3}], s{sE0} offen offset:{(t%4)*1024} sc1',('o',t))
    gemm80(a,vm,20,0,lambda t:f'a[{160+4*t}:{163+4*t}]',lambda t:('o',t),{})
    res_update(a)
    xt_store(a,vm,sXT2,sST2)

vXS=192
vA3=[40,56]
vW3=72
vCS3=92
vMR=108
vKC=110
vONE=112
vG=114
vHO=138
vHA=142
vCSA=143
vST3=144
D3=4
def xop(s): return f'a[{160+4*s}:{163+4*s}]' if s<24 else f'v[{vXS+4*(s-24)}:{vXS+4*(s-24)+3}]'

def p3_epi(v):
    A=vA3[v%2]; out=[]
    for k in range(4):
        i=2*k; g=A+i; u=A+8+i; t=vG+6*(k%4)
        cg=vCS3+i; cu=vCS3+8+i
        out+= [f'v_pk_fma_f32 v[{g}:{g+1}], v[{cg}:{cg+1}], v[{vMR}:{vMR+1}], v[{g}:{g+1}] op_sel_hi:[1,0,1]',
               f'v_pk_fma_f32 v[{u}:{u+1}], v[{cu}:{cu+1}], v[{vMR}:{vMR+1}], v[{u}:{u+1}] op_sel_hi:[1,0,1]',
               f'v_pk_mul_f32 v[{g}:{g+1}], v[{g}:{g+1}], v[{vMR}:{vMR+1}] op_sel:[0,1] op_sel_hi:[1,1]',
               f'v_pk_mul_f32 v[{u}:{u+1}], v[{u}:{u+1}], v[{vMR}:{vMR+1}] op_sel:[0,1] op_sel_hi:[1,1]',
               f'v_pk_mul_f32 v[{t}:{t+1}], v[{g}:{g+1}], v[{g}:{g+1}]',
               f'v_pk_fma_f32 v[{t}:{t+1}], v[{t}:{t+1}], v[{vKC}:{vKC+1}], v[{vKC}:{vKC+1}] op_sel:[0,0,1] op_sel_hi:[1,0,1]',
               f'v_pk_mul_f32 v[{t}:{t+1}], v[{t}:{t+1}], v[{g}:{g+1}]',
               f'v_exp_f32 v{t}, v{t}', f'v_exp_f32 v{t+1}, v{t+1}',
               f'v_pk_mul_f32 v[{u}:{u+1}], v[{u}:{u+1}], v[{g}:{g+1}]',
               f'v_pk_add_f32 v[{t}:{t+1}], v[{t}:{t+1}], v[{vONE}:{vONE+1}] op_sel_hi:[1,0]',
               f'v_rcp_f32 v{t}, v{t}', f'v_rcp_f32 v{t+1}, v{t+1}',
               None,
               f'v_pk_mul_f32 v[{u}:{u+1}], v[{u}:{u+1}], v[{t}:{t+1}]',
               f'v_cvt_pk_bf16_f32 v{vHO+k}, v{u}, v{u+1}']
    chains=[out[16*k:16*(k+1)] for k in range(4)]
    res=[]
    for j in range(16):
        for k in range(4):
            if chains[k][j] is not None: res.append(chains[k][j])
    return res

def p3_store(v):
    out=[(f's_add_u32 s{sE1}, s{sU0}, {v}',None),
         (f's_lshr_b32 s{sE2}, s{sE1}, 1',None),(f's_lshl_b32 s{sE2}, s{sE2}, 10',None),
         (f's_and_b32 s{sE1}, s{sE1}, 1',None),(f's_lshl_b32 s{sE1}, s{sE1}, 9',None),
         (f's_add_u32 s{sE1}, s{sE1}, s{sE2}',None),(f's_add_u32 s{sE1}, s{sE1}, s{sHst}',None)]
    if v==6:
        out+=[(f's_cmp_lt_u32 s{sC16}, 12',None),(f's_cselect_b32 s{sE1}, s{sE1}, {OOB:#x}',None)]
    out.append((f'buffer_store_dwordx4 v[{vHO}:{vHO+3}], v{vHA}, s[{S_WS}:{S_WS+3}], s{sE1} offen','hst'))
    return out

def p3(a, vm, issue_map):
    a.comment('==== P3 ====')
    a(f's_lshl_b32 s{sE0}, s{sR}, 2'); a(f's_add_u32 s{sE0}, s{sE0}, s{sW}'); a(f's_mul_i32 s{sE0}, s{sE0}, 40960'); a(f's_add_u32 s{sE0}, s{sE0}, s{sXT2}')
    for s in range(40):
        if s%4==0 and s>0: a(f's_add_u32 s{sE0}, s{sE0}, 4096')
        vm.issue(f'buffer_load_dwordx4 {xop(s)}, v{vL16}, s[{S_WS}:{S_WS+3}], s{sE0} offen offset:{(s%4)*1024} sc1',('x3',s))
        if s==7:
            a(f'v_and_b32 v{vT}, 31, v{vLANE}'); a(f'v_lshlrev_b32 v{vT}, 3, v{vT}')
            a(f's_lshl_b32 s{sE1}, s{sR}, 10'); a(f's_lshl_b32 s{sE2}, s{sW}, 8'); a(f's_add_u32 s{sE1}, s{sE1}, s{sE2}'); a(f's_add_u32 s{sE1}, s{sE1}, s{sST2}')
            for c in range(8):
                vm.issue(f'buffer_load_dwordx2 v[{vST3+2*c}:{vST3+2*c+1}], v{vT}, s[{S_WS}:{S_WS+3}], s{sE1} offen offset:{(c%2)*2048} sc1','st3')
                if c%2==1 and c<7: a(f's_add_u32 s{sE1}, s{sE1}, 4096')
    K1=-2*0.7978845608028654*1.4426950408889634; K2=K1*0.044715
    a(f'v_mov_b32 v{vKC}, {f2u(K2):#x}'); a(f'v_mov_b32 v{vKC+1}, {f2u(K1):#x}'); a(f'v_mov_b32 v{vONE}, 1.0'); a(f'v_mov_b32 v{vONE+1}, 1.0')
    v=vT+2
    a(f'v_lshrrev_b32 v{v}, 5, v{vLANE}')
    a(f'v_lshlrev_b32 v{vCSA}, 4, v{v}'); a(f'v_add_u32 v{vCSA}, {L_CSG}, v{vCSA}')
    a(f'v_bfe_u32 v{v+1}, v{vLANE}, 4, 1'); a(f'v_mul_u32_u24 v{v+1}, {54*1024}, v{v+1}')
    a(f'v_lshlrev_b32 v{v}, 8, v{v}'); a(f'v_add_u32 v{v+1}, v{v+1}, v{v}')
    a(f'v_and_b32 v{v}, 15, v{vLANE}'); a(f'v_lshlrev_b32 v{v}, 4, v{v}'); a(f'v_add_u32 v{vHA}, v{v+1}, v{v}')
    a(f's_lshl_b32 s{sE1}, s{sR}, 2'); a(f's_add_u32 s{sE1}, s{sE1}, s{sW}'); a(f's_mul_i32 s{sE1}, s{sE1}, {2*54*KB}'); a(f's_add_u32 s{sHst}, s{sE1}, s{sH}')
    NF=280
    def rd(f):
        v_,s=divmod(f,40); n=5+2*v_+s//20
        addr=(n%NRING)*SLOT+(s%20)*1024
        br,off=lds_base(addr)
        r=vW3+4*(f%(D3+1))
        return f'ds_read_b128 v[{r}:{r+3}], v{br} offset:{off}'
    fill=[]
    def beta(n):
        vm.wait(('ring',n)); a('s_barrier')
        for m in issue_map.get(n,[]):
            for tx,isv in ring_issue(m): fill.append((tx,('ring',m) if isv else None))
    beta(5)
    nread=0
    for f in range(D3): a(rd(f)); nread+=1
    for f in range(NF):
        v_,s=divmod(f,40)
        if s==0:
            if v_==0:
                pass
            else:
                for q_ in range(4): fill.append((f'ds_read_b128 v[{vCS3+4*q_}:{vCS3+4*q_+3}], v{vCSA} offset:{(v_-1)*128+q_*32}',None))
                fill.append(('s_waitcnt lgkmcnt(0)',None))
                for tx in p3_epi(v_-1): fill.append((tx,None))
                fill.extend(p3_store(v_-1))
        if v_==0:
            vm.wait(('x3',s))
            if s==10:
                vm.wait('st3')
                d=vST3
                for c in range(1,8):
                    a(f'v_add_f32 v{d}, v{d}, v{d+2*c}'); a(f'v_add_f32 v{d+1}, v{d+1}, v{d+2*c+1}')
                ln_finalize(a,d,d+1,vT)
                a(f'v_mov_b32 v{vMR}, v{d}'); a(f'v_mov_b32 v{vMR+1}, v{d+1}')
        a(f's_waitcnt lgkmcnt({min(15,nread-1-f)})')
        A=vA3[v_%2]; r=vW3+4*(f%(D3+1))
        c='0' if s==0 else f'v[{A}:{A+15}]'
        a(f'v_mfma_f32_32x32x16_bf16 v[{A}:{A+15}], v[{r}:{r+3}], {xop(s)}, {c}')
        if nread<NF:
            if nread%20==0: beta(5+nread//20)
            a(rd(nread)); nread+=1
        k=0
        while fill and k<4:
            tx,tag=fill.pop(0); k+=1
            if tag is None: a(tx)
            else: vm.issue(tx,tag)
    assert not fill
    for q_ in range(4): a(f'ds_read_b128 v[{vCS3+4*q_}:{vCS3+4*q_+3}], v{vCSA} offset:{6*128+q_*32}')
    a('s_waitcnt lgkmcnt(0)')
    for tx in p3_epi(6): a(tx)
    for tx,tag in p3_store(6):
        if tag is None: a(tx)
        else: vm.issue(tx,tag)

def cs_build_issue(a, vm):
    v=vT
    a(f'v_lshrrev_b32 v{v}, 5, v{vLANE}'); a(f's_lshl_b32 s{sE0}, s{sW}, 1'); a(f'v_add_u32 v{v}, s{sE0}, v{v}')
    a(f'v_add_u32 v{v+1}, s{sU0}, v{v}'); a(f'v_mul_u32_u24 v{v+1}, {20*128}, v{v+1}')
    a(f'v_and_b32 v{v+2}, 31, v{vLANE}'); a(f'v_lshlrev_b32 v{v+2}, 2, v{v+2}'); a(f'v_add_u32 v{v+1}, v{v+1}, v{v+2}')
    a(f's_cmp_lt_u32 s{sC16}, 12'); a(f's_cselect_b32 s{sE0}, 7, 6')
    a(f'v_mov_b32 v{v+2}, {OOB:#x}'); a(f'v_cmp_gt_u32 vcc, s{sE0}, v{v}'); a(f'v_cndmask_b32 v{v+1}, v{v+2}, v{v+1}, vcc')
    a(f's_mov_b32 s{sE0}, {CSP}')
    for sp in range(20):
        vm.issue(f'buffer_load_dword v{196+sp}, v{v+1}, s[{S_WS}:{S_WS+3}], s{sE0} offen offset:{sp*128}','csp')
def cs_build_finish(a, vm):
    vm.wait('csp')
    for sp in range(1,20): a(f'v_add_f32 v196, v196, v{196+sp}')
    v=vT
    a(f'v_lshlrev_b32 v{v}, 2, v{vLANE}'); a(f's_lshl_b32 s{sE0}, s{sW}, 8'); a(f's_add_u32 s{sE0}, s{sE0}, {L_CSG}'); a(f'v_add_u32 v{v}, s{sE0}, v{v}')
    a(f'ds_write_b32 v{v}, v196')

def p4(a, vm, issue_map):
    a.comment('==== P4 ====')
    a(f's_lshl_b32 s{sE1}, s{sQ}, 2'); a(f's_add_u32 s{sE1}, s{sE1}, s{sW}'); a(f's_mul_i32 s{sE1}, s{sE1}, {54*KB}'); a(f's_add_u32 s{sE2}, s{sE1}, s{sH}')
    sHL=sE2
    def hload(t):
        return [(f's_add_u32 s{sE1}, s{sHL}, {t*1024}',None),
                (f'buffer_load_dwordx4 a[{160+4*(t%24)}:{163+4*(t%24)}], v{vL16}, s[{S_WS}:{S_WS+3}], s{sE1} offen sc1',('h',t))]
    for t in range(24):
        for tx,tag in hload(t):
            if tag is None: a(tx)
            else: vm.issue(tx,tag)
    extra={}
    for t in range(1,54):
        if t+23<54: extra[t]=hload(t+23)
    gemm80(a,vm,54,19,lambda t:f'a[{160+4*(t%24)}:{163+4*(t%24)}]',lambda t:('h',t),issue_map,extra)

def out_store(a, vm):
    v=vT
    a(f'v_and_b32 v{v}, 15, v{vLANE}'); a(f'v_lshrrev_b32 v{v+1}, 4, v{vLANE}')
    a(f'v_mul_u32_u24 v{v}, 1280, v{v}'); a(f'v_lshlrev_b32 v{v+1}, 3, v{v+1}'); a(f'v_add_u32 v{v}, v{v}, v{v+1}')
    a(f's_lshl_b32 s{sE0}, s{sG}, 8'); a(f's_lshl_b32 s{sE1}, s{sQ}, 6'); a(f's_add_u32 s{sE0}, s{sE0}, s{sE1}')
    a(f's_lshl_b32 s{sE1}, s{sW}, 4'); a(f's_add_u32 s{sE0}, s{sE0}, s{sE1}'); a(f's_mul_i32 s{sE0}, s{sE0}, 1280')
    a(f's_mul_i32 s{sE1}, s{sC8}, 160'); a(f's_add_u32 s{sE0}, s{sE0}, s{sE1}')
    for b in range(5):
        a(f'buffer_store_dwordx2 v[{vRES+2*b}:{vRES+2*b+1}], v{v}, s[{S_OUT}:{S_OUT+3}], s{sE0} offen offset:{32*b}')

def p4_finish(a, vm):
    res_update(a)
    lout=L('FO'); lsc=L('FS'); lj=L('FJ')
    a(f's_cmp_eq_u32 s{sLAYER}, 1'); a(f's_cbranch_scc1 {lout}')
    sX1=76; sS1=77
    a(f's_add_u32 s{sX1}, s{sGB}, {G_XT1}'); a(f's_add_u32 s{sS1}, s{sGB}, {G_ST1}')
    a(f's_lshl_b32 s{sE0}, s{sQ}, 2'); a(f's_add_u32 s{sE0}, s{sE0}, s{sW}'); a(f's_cmp_eq_u32 s{sE0}, 15'); a(f's_cbranch_scc1 {lsc}')
    q0=list(vm.q)
    xt_store(a,vm,sX1,sS1,False)
    q1=list(vm.q); vm.q=q0
    a(f's_branch {lj}')
    a.label(lsc)
    xt_store(a,vm,sX1,sS1,True)
    assert vm.q==q1
    a.label(lj)
    return lout
```

```python
import struct
S_WS=4; S_X=8; S_OUT=12; S_DBG=16; S_A=20; S_B=24
sG=28; sRHO=29; sW=30; sR=31; sC16=32; sQ=33; sC8=34; sLAYER=35; sMODE=36; sGB=37
sDEST0=60; sDEST1=68; sCSP0=76; sCSP1=77; sFLG0=78; sFLG1=79
sXCC=80
vLANE=0; vL16=1; vRES=2
vCSQ=12
vSTG0=20; vSTG1=21
vL16b=22; vL16c=23
vT=24
OPT=dict(stop=99)
SPIN_MAX=2000000
def f2u(x): return struct.unpack('<I',struct.pack('<f',x))[0]
_lbl=[0]
def L(p='L'):
    _lbl[0]+=1; return f'{p}_{_lbl[0]}'
def set_exec(a, lo, hi):
    a(f's_mov_b32 exec_lo, {lo:#x}'); a(f's_mov_b32 exec_hi, {hi:#x}')
def full_exec(a): a('s_mov_b64 exec, -1')
```

```python
import sys
from asmlib import *
from layout import *

NAME='interleave_layers__sliding_local_dilated__glu_gated_geglu__prompt'
KN=NAME+'_kernel'

from regs import *
import p1
import pn

def srd(a, dst, ptr, size):
    a(f's_mov_b32 s{dst}, s{ptr}')
    a(f's_and_b32 s{dst+1}, s{ptr+1}, 0xffff')
    a(f's_mov_b32 s{dst+2}, {size:#x}')
    a(f's_mov_b32 s{dst+3}, 0x20000')

def sdiv(a, dst, src, d, maxn):
    mul,sh=magic_div(d,maxn)
    a(f's_mul_i32 s{dst}, s{src}, {mul}')
    a(f's_lshr_b32 s{dst}, s{dst}, {sh}')


def relayout_issue(a, k, sTask, sDest, sCsp, sFlg):
    t0=82
    sP,sM,sD,sAA,sC,sLim,sTt,sU,sV = t0,t0+1,t0+2,t0+3,t0+4,t0+5,t0+6,t0+7,t0+8
    sSO=t0+9
    lq,lgu,ldn,lo,lnone,lgo = L('RQ'),L('RG'),L('RD'),L('RO'),L('RN'),L('RGO')
    a(f's_mov_b32 s{sFlg}, 0')
    a(f's_cmp_lt_u32 s{sTask}, 320'); a(f's_cbranch_scc1 {lq}')
    a(f's_cmp_lt_u32 s{sTask}, 860'); a(f's_cbranch_scc1 {lgu}')
    a(f's_cmp_lt_u32 s{sTask}, 1130'); a(f's_cbranch_scc1 {ldn}')
    a(f's_cmp_lt_u32 s{sTask}, 1230'); a(f's_cbranch_scc1 {lo}')
    a(f's_mov_b32 s{sFlg}, 2')
    srd(a,S_A,42,0); srd(a,S_B,42,0)
    a(f's_mov_b32 s{sP}, 0'); a(f's_mov_b32 s{sM}, 16'); a(f's_mov_b32 s{sD}, 16'); a(f's_mov_b32 s{sAA}, 0'); a(f's_mov_b32 s{sC}, 0'); a(f's_mov_b32 s{sLim}, 0')
    for i in range(8): a(f's_mov_b32 s{sSO+i}, 0'); a(f's_mov_b32 s{sDest+i}, {OOB:#x}')
    a(f's_branch {lgo}')
    a.label(lq)
    srd(a,S_A,42,640*3840); srd(a,S_B,42,640*3840)
    sdiv(a,sU,sTask,20,319)
    a(f's_mul_i32 s{sV}, s{sU}, 20'); a(f's_sub_u32 s{sTt}, s{sTask}, s{sV}')
    a(f's_mov_b32 s{sP}, 3840'); a(f's_mov_b32 s{sM}, 52'); a(f's_mov_b32 s{sD}, 5'); a(f's_mov_b32 s{sAA}, 1280')
    a(f's_mul_i32 s{sC}, s{sU}, 80'); a(f's_mov_b32 s{sLim}, 15')
    a(f's_mul_i32 s{sSO}, s{sTt}, {32*3840}')
    for i in range(1,8): a(f's_add_u32 s{sSO+i}, s{sSO}, {4*i*3840}')
    a(f's_mul_i32 s{sV}, s{sU}, {160*KB}'); a(f's_lshl_b32 s{sTt}, s{sTt}, 10'); a(f's_add_u32 s{sV}, s{sV}, s{sTt}')
    for f in range(8): a(f's_add_u32 s{sDest+f}, s{sV}, {WQ+f*20*KB}')
    a(f's_branch {lgo}')
    a.label(lgu)
    srd(a,S_A,48,640*3456); srd(a,S_B,50,640*3456)
    a(f's_mov_b32 s{sFlg}, 1')
    a(f's_sub_u32 s{sTt}, s{sTask}, 320')
    sdiv(a,sU,sTt,20,539)
    a(f's_mul_i32 s{sV}, s{sU}, 20'); a(f's_sub_u32 s{sTt}, s{sTt}, s{sV}')
    a(f's_mov_b32 s{sP}, 3456'); a(f's_mov_b32 s{sM}, 32'); a(f's_mov_b32 s{sD}, 8'); a(f's_mov_b32 s{sAA}, {16*3456}')
    a(f's_lshl_b32 s{sC}, s{sU}, 7'); a(f's_mov_b32 s{sLim}, 16')
    a(f's_mul_i32 s{sSO}, s{sTt}, {32*3456}')
    for i in range(1,8): a(f's_add_u32 s{sSO+i}, s{sSO}, {(8*(i>>2)+4*(i&1))*3456}')
    a(f's_mul_i32 s{sV}, s{sU}, {160*KB}'); a(f's_lshl_b32 s{sCsp}, s{sTt}, 11'); a(f's_add_u32 s{sV}, s{sV}, s{sCsp}')
    for f in range(8): a(f's_add_u32 s{sDest+f}, s{sV}, {WG+((f&3)*40+(f>>2))*KB}')
    a(f's_mul_i32 s{sV}, s{sU}, {80*128}'); a(f's_lshl_b32 s{sCsp}, s{sTt}, 7'); a(f's_add_u32 s{sCsp}, s{sCsp}, s{sV}'); a(f's_add_u32 s{sCsp}, s{sCsp}, {CSP}')
    a(f's_branch {lgo}')
    ltail=L('RT')
    a.label(ldn)
    srd(a,S_A,52,1728*1280); srd(a,S_B,52,1728*1280)
    a(f's_sub_u32 s{sTt}, s{sTask}, 860')
    sdiv(a,sU,sTt,5,269)
    a(f's_mul_i32 s{sV}, s{sU}, 5'); a(f's_sub_u32 s{sTt}, s{sTt}, s{sV}')
    a(f's_mul_i32 s{sSO}, s{sU}, {32*1280}')
    for i in range(1,8): a(f's_add_u32 s{sSO+i}, s{sSO}, {(16*(i>>2)+4*((i>>1)&1)+8*(i&1))*1280}')
    a(f's_mov_b32 s{sLim}, {54*5*KB}')
    a(f's_mul_i32 s{sU}, s{sU}, {5*KB}'); a(f's_add_u32 s{sU}, s{sU}, {WD}')
    a(f's_branch {ltail}')
    a.label(lo)
    srd(a,S_A,44,640*1280); srd(a,S_B,44,640*1280)
    a(f's_sub_u32 s{sTt}, s{sTask}, 1130')
    sdiv(a,sU,sTt,5,99)
    a(f's_mul_i32 s{sV}, s{sU}, 5'); a(f's_sub_u32 s{sTt}, s{sTt}, s{sV}')
    lo2=L('RO2'); lo3=L('RO3')
    a(f's_cmp_ge_u32 s{sU}, 16'); a(f's_cbranch_scc1 {lo2}')
    a(f's_mul_i32 s{sSO}, s{sU}, {40*1280}')
    for i in range(1,8): a(f's_add_u32 s{sSO+i}, s{sSO}, {(20*(i&1)+4*(i>>1))*1280}')
    a(f's_branch {lo3}')
    a.label(lo2)
    a(f's_sub_u32 s{sV}, s{sU}, 16'); a(f's_mul_i32 s{sV}, s{sV}, {160*1280}')
    for i in range(0,8): a(f's_add_u32 s{sSO+i}, s{sV}, {(40*(i>>1)+16+20*(i&1))*1280}')
    a.label(lo3)
    a(f's_mov_b32 s{sLim}, {20*5*KB}')
    a(f's_mul_i32 s{sU}, s{sU}, {5*KB}'); a(f's_add_u32 s{sU}, s{sU}, {WO}')
    a.label(ltail)
    m5,sh5=magic_div(5,39)
    for f in range(8):
        a(f's_lshl_b32 s{sV}, s{sTt}, 3'); a(f's_add_u32 s{sV}, s{sV}, {f}')
        a(f's_mul_i32 s{sM}, s{sV}, {m5}'); a(f's_lshr_b32 s{sM}, s{sM}, {sh5}')
        a(f's_mul_i32 s{sD}, s{sM}, 5'); a(f's_sub_u32 s{sV}, s{sV}, s{sD}')
        a(f's_lshl_b32 s{sV}, s{sV}, 10'); a(f's_mul_i32 s{sM}, s{sM}, s{sLim}')
        a(f's_add_u32 s{sV}, s{sV}, s{sM}'); a(f's_add_u32 s{sDest+f}, s{sV}, s{sU}')
    a(f's_mov_b32 s{sP}, 1280'); a(f's_mov_b32 s{sM}, 16'); a(f's_mov_b32 s{sD}, 16'); a(f's_mov_b32 s{sAA}, 0')
    a(f's_lshl_b32 s{sC}, s{sTt}, 8'); a(f's_mov_b32 s{sLim}, 16')
    a.label(lgo)
    v=vT
    a(f'v_lshrrev_b32 v{v}, 4, v{vLANE}')
    a(f'v_and_b32 v{v+1}, 15, v{vLANE}')
    a(f'v_lshlrev_b32 v{v+2}, 1, v{v}')
    a(f'v_xor_b32 v{v+1}, v{v+1}, v{v+2}')
    a(f'v_mul_lo_u32 v{v}, v{v}, s{sP}')
    for var in range(2):
        x=v+3; q=v+4; o=v+5+var
        a(f'v_xor_b32 v{x}, {8*var}, v{v+1}')
        a(f'v_mul_lo_u32 v{q}, v{x}, s{sM}'); a(f'v_lshrrev_b32 v{q}, 8, v{q}')
        a(f'v_mul_lo_u32 v{o}, v{q}, s{sD}'); a(f'v_sub_u32 v{o}, v{x}, v{o}')
        a(f'v_lshlrev_b32 v{o}, 4, v{o}')
        a(f'v_mul_lo_u32 v{q}, v{q}, s{sAA}'); a(f'v_add_u32 v{o}, v{o}, v{q}')
        a(f'v_add_u32 v{o}, v{o}, v{v}'); a(f'v_add_u32 v{o}, s{sC}, v{o}')
        a(f'v_cmp_le_u32 vcc, s{sLim}, v{x}')
        a(f'v_mov_b32 v{q}, {OOB:#x}')
        a(f'v_cndmask_b32 v{o}, v{o}, v{q}, vcc')
    a(f's_lshl_b32 s{sV}, s{sW}, 13'); a(f's_add_u32 s{sV}, s{sV}, {k*32768}')
    for i in range(8):
        g16=i>>1
        sr_=S_B if (g16&1) else S_A
        a(f's_add_u32 m0, s{sV}, {i*1024}')
        a(f'buffer_load_dwordx4 v{v+5+(g16&1)}, s[{sr_}:{sr_+3}], s{sSO+i} offen lds')

def relayout_finish(a, k, sDest, sCsp, sFlg):
    lskip=L('RFS'); lnocs=L('RFC')
    a(f's_cmp_eq_u32 s{sFlg}, 2'); a(f's_cbranch_scc1 {lskip}')
    v=vT; d=40
    a(f'v_lshrrev_b32 v{v}, 4, v{vLANE}')
    a(f'v_bfe_u32 v{v+1}, v{vLANE}, 2, 2')
    a(f'v_and_b32 v{v+2}, 3, v{vLANE}')
    a(f'v_lshlrev_b32 v{v+3}, 3, v{v}'); a(f'v_add_u32 v{v+3}, v{v+3}, v{v+1}'); a(f'v_lshlrev_b32 v{v+3}, 8, v{v+3}')
    a(f'v_lshlrev_b32 v{v+2}, 3, v{v+2}'); a(f'v_add_u32 v{v+3}, v{v+3}, v{v+2}')
    a(f'v_and_b32 v{v}, 1, v{v}'); a(f'v_lshlrev_b32 v{v}, 2, v{v}'); a(f'v_add_u32 v{v}, v{v}, v{v+1}'); a(f'v_lshlrev_b32 v{v}, 5, v{v}')
    a(f'v_xor_b32 v{v+3}, v{v+3}, v{v}')
    a(f's_lshl_b32 s82, s{sW}, 13'); a(f's_add_u32 s82, s82, {k*32768}')
    a(f'v_add_u32 v{v+3}, s82, v{v+3}')
    for f in range(8):
        a(f'v_xor_b32 v{v+4}, {f<<5}, v{v+3}')
        a(f'ds_read_b64_tr_b16 v[{d+4*f}:{d+4*f+1}], v{v+4}')
        a(f'ds_read_b64_tr_b16 v[{d+4*f+2}:{d+4*f+3}], v{v+4} offset:1024')
    a('s_waitcnt lgkmcnt(0)')
    for f in range(8):
        a(f'buffer_store_dwordx4 v[{d+4*f}:{d+4*f+3}], v{vL16}, s[{S_WS}:{S_WS+3}], s{sDest+f} offen sc1')
    a(f's_cmp_eq_u32 s{sFlg}, 1'); a(f's_cbranch_scc0 {lnocs}')
    a(f'v_mov_b32 v{v}, 0x3f803f80')
    a(f'v_and_b32 v{v+1}, 31, v{vLANE}'); a(f'v_lshlrev_b32 v{v+1}, 2, v{v+1}')
    for f in range(4):
        acc=v+2
        a(f'v_mov_b32 v{acc}, 0')
        for ff in (f,f+4):
            for j in range(4): a(f'v_dot2_f32_bf16 v{acc}, v{d+4*ff+j}, v{v}, v{acc}')
        a(f'v_mov_b32 v{acc+1}, v{acc}')
        a(f'v_permlane32_swap_b32 v{acc}, v{acc+1}')
        a(f'v_add_f32 v{acc}, v{acc}, v{acc+1}')
        a(f's_add_u32 s82, s{sCsp}, {f*20*128}')
        a(f'buffer_store_dword v{acc}, v{v+1}, s[{S_WS}:{S_WS+3}], s82 offen sc1')
    a.label(lnocs)
    a.label(lskip)

def stats_from_res(a, t):
    a(f'v_mov_b32 v{t+2}, 0x3f803f80')
    a(f'v_mov_b32 v{t}, 0'); a(f'v_mov_b32 v{t+1}, 0')
    for i in range(10):
        a(f'v_dot2_f32_bf16 v{t}, v{vRES+i}, v{t+2}, v{t}')
        a(f'v_dot2_f32_bf16 v{t+1}, v{vRES+i}, v{vRES+i}, v{t+1}')
    for sw in ('v_permlane32_swap_b32','v_permlane16_swap_b32'):
        a(f'v_mov_b32 v{t+3}, v{t}'); a(f'v_mov_b32 v{t+4}, v{t+1}')
        a(f'{sw} v{t}, v{t+3}'); a(f'{sw} v{t+1}, v{t+4}')
        a(f'v_add_f32 v{t}, v{t}, v{t+3}'); a(f'v_add_f32 v{t+1}, v{t+1}, v{t+4}')

def prologue(a):
    a(f's_cmp_ge_u32 s2, 256'); a('s_cbranch_scc1 L_END')
    a('s_load_dwordx16 s[40:55], s[0:1], 0')
    a('s_load_dwordx4 s[56:59], s[0:1], 64')
    a(f's_and_b32 s{sG}, s2, 7'); a(f's_lshr_b32 s{sRHO}, s2, 3')
    a(f's_lshr_b32 s{sR}, s{sRHO}, 4'); a(f's_and_b32 s{sC16}, s{sRHO}, 15')
    a(f's_lshr_b32 s{sQ}, s{sRHO}, 3'); a(f's_and_b32 s{sC8}, s{sRHO}, 7')
    a(f'v_lshrrev_b32 v1, 6, v0'); a('s_nop 0'); a(f'v_readfirstlane_b32 s{sW}, v1')
    a(f'v_and_b32 v{vLANE}, 63, v0'); a(f'v_lshlrev_b32 v{vL16}, 4, v{vLANE}')
    a(f'v_add_u32 v{vL16b}, 0x10000, v{vL16}'); a(f'v_add_u32 v{vL16c}, 0x20000, v{vL16}')
    a(f's_mul_i32 s{sGB}, s{sG}, {GRP_SZ}'); a(f's_add_u32 s{sGB}, s{sGB}, {GRP}')
    a(f's_getreg_b32 s{sXCC}, hwreg(HW_REG_XCC_ID)'); a(f's_and_b32 s{sXCC}, s{sXCC}, 15')
    a(f's_mov_b32 s{sLAYER}, 0'); a(f's_mov_b32 s{sMODE}, 0')
    a('s_waitcnt lgkmcnt(0)')
    srd(a,S_WS,58,WS_USED); srd(a,S_X,40,S*D*2); srd(a,S_OUT,54,S*D*2); srd(a,S_DBG,56,256)

def startup(a):
    a.comment('==== startup: relayout tasks ====')
    a(f's_lshl_b32 s38, s2, 2'); a(f's_add_u32 s38, s38, s{sW}')
    a(f's_add_u32 s39, s38, 704')
    a(f's_cmp_lt_u32 s38, 320'); a(f's_cselect_b32 s39, 2000, s39')
    a(f's_cmp_ge_u32 s38, 526'); a(f's_cselect_b32 s39, 2000, s39')
    relayout_issue(a,0,38,sDEST0,sCSP0,sFLG0)
    relayout_issue(a,1,39,sDEST1,sCSP1,sFLG1)
    v=vT
    a(f'v_and_b32 v{v}, 15, v{vLANE}'); a(f'v_lshrrev_b32 v{v+1}, 4, v{vLANE}')
    a(f'v_mul_u32_u24 v{v}, 1280, v{v}'); a(f'v_lshlrev_b32 v{v+1}, 3, v{v+1}'); a(f'v_add_u32 v{v}, v{v}, v{v+1}')
    a(f's_lshl_b32 s82, s{sG}, 8'); a(f's_lshl_b32 s83, s{sQ}, 6'); a(f's_add_u32 s82, s82, s83')
    a(f's_lshl_b32 s83, s{sW}, 4'); a(f's_add_u32 s82, s82, s83'); a(f's_mul_i32 s82, s82, 1280')
    a(f's_mul_i32 s83, s{sC8}, 160'); a(f's_add_u32 s82, s82, s83')
    for b in range(5):
        a(f'buffer_load_dwordx2 v[{vRES+2*b}:{vRES+2*b+1}], v{v}, s[{S_X}:{S_X+3}], s82 offen offset:{32*b}')
    return

def startup_finish(a, n_after):
    a(f's_waitcnt vmcnt({n_after})')
    relayout_finish(a,0,sDEST0,sCSP0,sFLG0)
    relayout_finish(a,1,sDEST1,sCSP1,sFLG1)
    a(f's_mov_b32 s{sFLG0}, 0'); a(f's_mov_b32 s{sFLG1}, 0')
    t=vT+8
    stats_from_res(a,t)
    a(f'v_and_b32 v{vT}, 15, v{vLANE}'); a(f'v_lshlrev_b32 v{vT}, 3, v{vT}')
    a(f's_lshl_b32 s82, s{sC8}, 11'); a(f's_lshl_b32 s83, s{sQ}, 9'); a(f's_add_u32 s82, s82, s83')
    a(f's_lshl_b32 s83, s{sW}, 7'); a(f's_add_u32 s82, s82, s83'); a(f's_add_u32 s82, s82, s{sGB}'); a(f's_add_u32 s82, s82, {G_ST0}')
    set_exec(a,0xffff,0)
    a(f'buffer_store_dwordx2 v[{t}:{t+1}], v{vT}, s[{S_WS}:{S_WS+3}], s82 offen sc1')
    full_exec(a)
    lk=L('SF')
    a(f's_cmp_lg_u32 s{sW}, 0'); a(f's_cbranch_scc1 {lk}')
    a(f'v_mov_b32 v{vT}, 0'); a(f's_lshl_b32 s82, s{sRHO}, 2'); a(f's_add_u32 s82, s82, s{sGB}'); a(f's_add_u32 s82, s82, {G_FLAG}')
    set_exec(a,1,0)
    a(f'buffer_store_dword v{vT}, v{vT}, s[{S_WS}:{S_WS+3}], s82 offen sc1')
    full_exec(a)
    a.label(lk)
    a('s_waitcnt vmcnt(0)'); a('s_barrier')
    lk=L('SF')
    a(f's_cmp_lg_u32 s{sW}, 0'); a(f's_cbranch_scc1 {lk}')
    a(f's_or_b32 s82, s{sXCC}, 0x80'); a(f'v_mov_b32 v{vT}, s82'); a(f'v_mov_b32 v{vT+1}, s2')
    set_exec(a,1,0)
    a(f'buffer_store_byte v{vT}, v{vT+1}, s[{S_DBG}:{S_DBG+3}], 0 offen sc1')
    full_exec(a)
    a.label(lk)

def build():
    a=Asm()
    vm=VM(a)
    prologue(a)
    startup(a)
    p1.p1_setup(a,0)
    p1.p1_prefetch(a,vm,0)
    p1.stg_addr_setup(a)
    startup_finish(a,12)
    vm.q=[]
    pn.stream_setup(a)
    pn.layer_setup(a)
    p1.p1_kloop(a,vm,0,{15:pn.cs_build_issue,18:pn.cs_build_finish})
    vm.wait_all()
    a('s_branch L_COMMON')
    a.label('L_P1_L1')
    vm.q=[]
    p1.p1_setup(a,1)
    p1.p1_prefetch(a,vm,1)
    p1.p1_kloop(a,vm,1)
    vm.wait_all()
    a.label('L_COMMON')
    p1.p1_tail(a,vm)
    for n in (0,1,2): pn.ring_emit(a,vm,n)
    p1.attention(a,vm)
    pn.xbar(a,vm,[3,4,5,6])
    pn.p2(a,vm)
    pn.xbar(a,vm,[7,8,9,10,11])
    pn.p3(a,vm,{n:[n+5] for n in range(7,17)})
    pn.xbar(a,vm,[22,23,24,25])
    pn.p4(a,vm,{n:[n+5] for n in range(21,28)})
    lout=pn.p4_finish(a,vm)
    pn.xbar(a,vm,[],halo=True)
    a(f's_mov_b32 s{sLAYER}, 1')
    pn.layer_setup(a)
    a('s_nop 7'); a('s_nop 7')
    a('s_branch L_P1_L1')
    a.label(lout)
    pn.out_store(a,vm)
    a.label('L_ABORT')
    a.label('L_END')
    a('s_waitcnt vmcnt(0)')
    a('s_endpgm')
    n=a.fix_hazards()
    hdr=open('cdna_kernels/'+NAME+'.s.ref').read().split('; Override')[0]
    out=hdr+'; Override launch geometry by editing the next line.\n'
    out+=f'; @launch grid=(256,1,1) block=(256,1,1) lds={LDS_TOTAL}\n'
    out+='.amdgcn_target "amdgcn-amd-amdhsa--gfx950"\n.text\n'
    out+=f'.globl {KN}\n.p2align 8\n.type {KN},@function\n{KN}:\n'
    out+=a.text()
    out+=f'''.section .rodata,"a"
.p2align 6
.amdhsa_kernel {KN}
  .amdhsa_next_free_vgpr 512
  .amdhsa_next_free_sgpr 102
  .amdhsa_accum_offset 256
  .amdhsa_group_segment_fixed_size 0
  .amdhsa_kernarg_size 80
  .amdhsa_user_sgpr_count 2
  .amdhsa_user_sgpr_kernarg_segment_ptr 1
  .amdhsa_system_sgpr_workgroup_id_x 1
.end_amdhsa_kernel
'''
    return out,a.count(),n

if __name__=='__main__':
    path=sys.argv[1] if len(sys.argv)>1 else 'cdna_kernels/'+NAME+'.s'
    for kv in sys.argv[2:]:
        k,v=kv.split('='); OPT[k]=int(v)
    o,c,n=build()
    open(path,'w').write(o)
    print('instrs',c,'nops added',n,'bytes',len(o))
```

```python
S=2048; D=640; DF=1728; H=32; DH=20
KB=1024
WQ=0
WQ_SZ=16*8*20*KB
WO=WQ+WQ_SZ
WO_SZ=8*20*5*KB
WG=WO+WO_SZ
WG_SZ=108*40*KB
WD=WG+WG_SZ
WD_SZ=8*54*5*KB
CSP=WD+WD_SZ
CSP_SZ=108*20*128
GRP=((CSP+CSP_SZ+4095)//4096)*4096
XT_SZ=8*40*KB
O_SZ=16*20*KB
H_SZ=16*54*KB
ST_SZ=8*256*8
G_XT2=[0, XT_SZ]
G_XT1=2*XT_SZ
G_O=[3*XT_SZ, 3*XT_SZ+O_SZ]
G_H=[3*XT_SZ+2*O_SZ, 3*XT_SZ+2*O_SZ+H_SZ]
_st=3*XT_SZ+2*O_SZ+2*H_SZ
G_ST0=_st
G_ST2=[_st+ST_SZ,_st+2*ST_SZ]
G_ST1=_st+3*ST_SZ
G_FLAG=_st+4*ST_SZ
GRP_SZ=((G_FLAG+256+4095)//4096)*4096
WS_USED=GRP+8*GRP_SZ
OOB=0x40000000
SLOT=20*KB
NRING=7
MISC=NRING*SLOT
L_CSF=MISC
L_STAT=MISC+8192
L_ATC=MISC+8192+2048
L_DUMMY=MISC+8192+2048+4096
LDS_TOTAL=160*KB
XR=65536
XR_SLOT=16*KB
XR_N=4
HALO=0
STG=XR
SP=288
F_QA,F_QB,F_Z,F_KA,F_KB,F_VA,F_VB=0,48,96,112,160,208,248
def unit0(c16): return 7*c16 if c16<12 else 84+6*(c16-12)
def nunits(c16): return 7 if c16<12 else 6
if __name__=='__main__':
    print('WS_USED',WS_USED, 'GRP',GRP,'GRP_SZ',GRP_SZ)
```

```python
import struct
S_WS=4; S_X=8; S_OUT=12; S_DBG=16; S_A=20; S_B=24
sG=28; sRHO=29; sW=30; sR=31; sC16=32; sQ=33; sC8=34; sLAYER=35; sMODE=36; sGB=37
sDEST0=60; sDEST1=68; sCSP0=76; sCSP1=77; sFLG0=78; sFLG1=79
sXCC=80
vLANE=0; vL16=1; vRES=2
vCSQ=12
vSTG0=20; vSTG1=21
vL16b=22; vL16c=23
vT=24
OPT=dict(stop=99)
SPIN_MAX=2000000
def SCL(): return ' sc1' if OPT.get('scl',1) else ''
def f2u(x): return struct.unpack('<I',struct.pack('<f',x))[0]
_lbl=[0]
def L(p='L'):
    _lbl[0]+=1; return f'{p}_{_lbl[0]}'
def set_exec(a, lo, hi):
    a(f's_mov_b32 exec_lo, {lo:#x}'); a(f's_mov_b32 exec_hi, {hi:#x}')
def full_exec(a): a('s_mov_b64 exec, -1')

import layout as _ly
STAMPBASE=_ly.WS_USED
_st=[0]; STAMP_NAMES=[]
def stamp(a, name, real=False):
    if not OPT.get('stamp'): return
    i=_st[0]; _st[0]+=1; STAMP_NAMES.append(name)
    lk=L('ST')
    a(f's_cmp_lg_u32 s{sW}, 0'); a(f's_cbranch_scc1 {lk}')
    a('s_memrealtime s[58:59]' if real else 's_memtime s[58:59]'); a('s_waitcnt lgkmcnt(0)')
    a('v_mov_b32 v38, s58'); a('s_lshl_b32 s57, s2, 9'); a(f's_add_u32 s57, s57, {STAMPBASE+4*i}')
    if OPT.get('_inlayer'):
        a(f's_lshl_b32 s56, s{sLAYER}, 8'); a('s_add_u32 s57, s57, s56')
    a('v_mov_b32 v39, 0')
    set_exec(a,1,0)
    a(f'buffer_store_dword v38, v39, s[{S_WS}:{S_WS+3}], s57 offen')
    full_exec(a)
    a.label(lk)
```

```python
S=2048; D=640; DF=1728; H=32; DH=20
KB=1024
WQ=0
WQ_SZ=16*8*20*KB
WO=WQ+WQ_SZ
WO_SZ=8*20*5*KB
WG=WO+WO_SZ
WG_SZ=108*40*KB
WD=WG+WG_SZ
WD_SZ=8*54*5*KB
CSP=WD+WD_SZ
CSP_SZ=108*20*128
GRP=((CSP+CSP_SZ+4095)//4096)*4096
XT_SZ=8*40*KB
O_SZ=16*20*KB
H_SZ=16*54*KB
ST_SZ=8*256*8
R_O=0; R_XT2=O_SZ; R_H=R_XT2+XT_SZ; R_ST2=R_H+H_SZ
LSTRIDE=R_ST2+ST_SZ
R_XT1=2*LSTRIDE; R_ST1=R_XT1+XT_SZ
SAFEOFF=R_ST1+ST_SZ
G_ST0=2*SAFEOFF
G_HX=G_ST0+ST_SZ
G_HST=G_HX+40*512
G_FLAG=G_HST+1024
GRP_SZ=((G_FLAG+256+4095)//4096)*4096
FLG=GRP+8*GRP_SZ
F_QF=FLG
F_SF=FLG+2048
F_HF=FLG+3072
F_BF=FLG+4096
WS_USED=FLG+8192
OOB=0x40000000
SLOT=20*KB
NRING=7
MISC=NRING*SLOT
L_CSF=MISC
L_STAT=MISC+8192
L_ATC=MISC+8192+2048
L_TCH=L_ATC+3072
LDS_TOTAL=160*KB
XR=65536
XR_SLOT=16*KB
XR_N=4
HALO=0
STG=XR
SP=296
F_QA,F_QB,F_Z,F_KA,F_KB,F_VA,F_VB=0,48,96,112,160,208,248
if __name__=='__main__':
    print('WS_USED',WS_USED, 'GRP',GRP,'GRP_SZ',GRP_SZ, 'LSTRIDE',LSTRIDE,'SAFEOFF',SAFEOFF)
```

```python
from asmlib import *
from layout import *
from regs import *

vACC=64
vX=136
vONES=168
vXA=172; vXB=173; vL16W=174; vPOLL=175; vPM=176; vSTO=177
vPO=178
sMSK=88; sPB=90; sPE=91
vSD=180
vSM=40
vE=58

def poll_issue_text(voff, soff): return f'buffer_load_dword v{vPOLL}, v{voff}, s[{S_WS}:{S_WS+3}], s{soff} offen sc1'
def spin_check(a, vm, voff, soff, sexp, rng, first_loaded, sleep=0):
    lok=L('PK'); lloop=L('PL')
    def test():
        a(f'v_subrev_u32 v{vT}, s{sexp}, v{vPOLL}')
        a(f'v_cmp_le_u32 vcc, {rng}, v{vT}')
        a(f's_and_b64 s[{sPA}:{sPA+1}], vcc, s[{sMSK}:{sMSK+1}]')
        a(f's_cmp_eq_u64 s[{sPA}:{sPA+1}], 0')
    if first_loaded:
        vm.wait('poll'); test(); a(f's_cbranch_scc1 {lok}')
    a(f's_mov_b32 s{sSPIN}, 0')
    a.label(lloop)
    a(f's_add_u32 s{sSPIN}, s{sSPIN}, 1'); a(f's_cmp_gt_u32 s{sSPIN}, {SPIN_MAX}'); a('s_cbranch_scc1 L_END')
    if sleep: a(f's_sleep {sleep}')
    a(poll_issue_text(voff,soff)); a('s_waitcnt vmcnt(0)')
    test(); a(f's_cbranch_scc0 {lloop}')
    a.label(lok)

def x_addr_setup(a, layer, sxs, sm0, st):
    v=vT
    a(f'v_and_b32 v{v}, 15, v{vLANE}'); a(f'v_lshrrev_b32 v{v+1}, 4, v{vLANE}')
    if layer==0:
        a(f'v_mul_u32_u24 v{vXA}, 1280, v{v}'); a(f'v_lshlrev_b32 v{v+1}, 4, v{v+1}'); a(f'v_add_u32 v{vXA}, v{vXA}, v{v+1}')
        a(f'v_add_u32 v{vXB}, {16*1280}, v{vXA}')
        a(f's_lshl_b32 s{sxs}, s{sG}, 8'); a(f's_lshl_b32 s{st}, s{sR}, 7'); a(f's_add_u32 s{sxs}, s{sxs}, s{st}')
        a(f's_lshl_b32 s{st}, s{sW}, 5'); a(f's_add_u32 s{sxs}, s{sxs}, s{st}'); a(f's_mul_i32 s{sxs}, s{sxs}, 1280')
    else:
        a(f'v_lshrrev_b32 v{v+2}, 1, v{v+1}'); a(f'v_lshlrev_b32 v{v+2}, 10, v{v+2}')
        a(f'v_and_b32 v{v+1}, 1, v{v+1}'); a(f'v_lshlrev_b32 v{v+1}, 9, v{v+1}')
        a(f'v_lshlrev_b32 v{vXA}, 4, v{v}'); a(f'v_add_u32 v{vXA}, v{vXA}, v{v+1}'); a(f'v_add_u32 v{vXA}, v{vXA}, v{v+2}')
        a(f'v_add_u32 v{vXB}, 256, v{vXA}')
        a(f's_mul_i32 s{sxs}, s{sMODE}, {SAFEOFF}'); a(f's_add_u32 s{sxs}, s{sxs}, s{sGB}'); a(f's_add_u32 s{sxs}, s{sxs}, {R_XT1}'); a(f's_add_u32 s{sxs}, s{sxs}, s{rX3_ld}')
    a(f's_lshl_b32 s{sm0}, s{sW}, 11'); a(f's_add_u32 s{sm0}, s{sm0}, {XR}')

def x_slot_dma(layer, n, sxs=sXS, sm0=sM0B, ta=sT0, tb=sT1):
    out=[]
    srd_= S_X if layer==0 else S_WS
    step= 64 if layer==0 else 2048
    base=(n%XR_N)*XR_SLOT
    sc=SCL() if layer==1 else ''
    tt_reg=(ta,tb)
    for half,(vo,mo) in enumerate(((vXA,0),(vXB,1024))):
        for tt in range(2):
            t=2*n+tt
            if half==0: out.append((f's_add_u32 s{tt_reg[tt]}, s{sxs}, {step*t}',0))
            out.append((f's_add_u32 m0, s{sm0}, {base+mo+tt*8192}',0))
            out.append((f'buffer_load_dwordx4 v{vo}, s[{srd_}:{srd_+3}], s{tt_reg[tt]} offen{sc} lds',1))
    return out
def emit_list(a, vm, lst, tag):
    for t,isv in lst:
        if isv: vm.issue(t,tag)
        else: a(t)

def w_load(t):
    return [(f's_add_u32 s{sT2}, s{sWQ}, {t*1024}',0),
            (f'buffer_load_dwordx4 a[{t*4}:{t*4+3}], v{vL16}, s[{S_WS}:{S_WS+3}], s{sT2} offen',1),
            (f'buffer_load_dwordx4 a[{80+t*4}:{80+t*4+3}], v{vL16W}, s[{S_WS}:{S_WS+3}], s{sT2} offen',1)]

def poll_setup(a, layer):
    if layer==1:
        a(f's_sub_u32 s{sPB}, s{sG}, 1'); a(f's_lshl_b32 s{sPB}, s{sPB}, 7'); a(f's_add_u32 s{sPB}, s{sPB}, {F_HF}')
        a(f's_cmp_eq_u32 s{sG}, 0'); a(f's_cselect_b32 s{sPB}, {F_HF}, s{sPB}')
        a(f's_mov_b32 s{sMSK}, 0xff'); a(f's_mov_b32 s{sMSK+1}, 0')
        a(f's_cmp_eq_u32 s{sG}, 0'); a(f's_cselect_b32 s{sMSK}, 0, s{sMSK}')
        a(f's_cmp_lg_u32 s{sR}, 0'); a(f's_cselect_b32 s{sMSK}, 0, s{sMSK}')
        a(f's_add_u32 s{sPE}, s{sN}, 2')
        a(f'v_lshlrev_b32 v{vPO}, 2, v{vLANE}')
    else:
        a(f's_mov_b32 s{sPB}, {F_SF}'); a(f's_add_u32 s{sPE}, s{sN}, 0x10')
        a(f'v_lshlrev_b32 v{vPO}, 4, v{vLANE}')

vP4=196
def sf_issue_text(): return f'buffer_load_dwordx4 v[{vP4}:{vP4+3}], v{vPO}, s[{S_WS}:{S_WS+3}], s{sPB} offen sc1'
def sf_check(a, vm):
    lok=L('SK'); lloop=L('SL')
    def test():
        for i in range(4): a(f'v_subrev_u32 v{vP4+i}, s{sPE}, v{vP4+i}')
        a(f'v_max_u32 v{vT}, v{vP4}, v{vP4+1}'); a(f'v_max_u32 v{vT+1}, v{vP4+2}, v{vP4+3}'); a(f'v_max_u32 v{vT}, v{vT}, v{vT+1}')
        a(f'v_cmp_le_u32 s[{sPA}:{sPA+1}], 8, v{vT}')
        a(f's_cmp_eq_u64 s[{sPA}:{sPA+1}], 0')
    vm.wait('poll'); test(); a(f's_cbranch_scc1 {lok}')
    a(f's_mov_b32 s{sSPIN}, 0')
    a.label(lloop)
    a(f's_add_u32 s{sSPIN}, s{sSPIN}, 1'); a(f's_cmp_gt_u32 s{sSPIN}, {SPIN_MAX}'); a('s_cbranch_scc1 L_END')
    a('s_sleep 4')
    a(sf_issue_text()); a('s_waitcnt vmcnt(0)')
    test(); a(f's_cbranch_scc0 {lloop}')
    a.label(lok)
    for i in range(4): a(f'v_xor_b32 v{vP4+i}, s{sXCC}, v{vP4+i}')
    a(f'v_or_b32 v{vT}, v{vP4}, v{vP4+1}'); a(f'v_or_b32 v{vT+1}, v{vP4+2}, v{vP4+3}'); a(f'v_or_b32 v{vT}, v{vT}, v{vT+1}')
    a(f'v_cmp_ne_u32 s[{sPA}:{sPA+1}], 0, v{vT}')
    a(f's_lshl_b32 s{sT0}, s{sG}, 3'); a(f's_lshr_b64 s[{sPA}:{sPA+1}], s[{sPA}:{sPA+1}], s{sT0}'); a(f's_and_b32 s{sT0}, s{sPA}, 0xff')
    a(f's_cmp_lg_u32 s{sT0}, 0'); a(f's_cselect_b32 s{sMODE}, 1, 0')
    if OPT.get('force_safe'): a(f's_mov_b32 s{sMODE}, 1')

def stats_loads(a, vm, layer):
    v=vT
    a(f's_mul_i32 s{sT0}, s{sW}, 36'); a(f'v_add_u32 v{v}, s{sT0}, v{vLANE}')
    a(f'v_lshlrev_b32 v{v+1}, 3, v{v}')
    a(f's_lshl_b32 s{sT0}, s{sR}, 10'); a(f's_sub_u32 s{sT0}, s{sT0}, 128'); a(f's_add_u32 s{sT0}, s{sT0}, s{sGB}')
    if layer==0:
        a(f's_add_u32 s{sT0}, s{sT0}, {G_ST0}')
        a(f's_sub_u32 s{sT1}, s{sGB}, {GRP_SZ}'); a(f's_add_u32 s{sT1}, s{sT1}, {G_ST0+240*8}')
    else:
        a(f's_mul_i32 s{sT1}, s{sMODE}, {SAFEOFF}'); a(f's_add_u32 s{sT0}, s{sT0}, s{sT1}'); a(f's_add_u32 s{sT0}, s{sT0}, {R_ST1}')
        a(f's_sub_u32 s{sT1}, s{sGB}, {GRP_SZ}'); a(f's_add_u32 s{sT1}, s{sT1}, {G_HST}')
    a(f's_cmp_eq_u32 s{sG}, 0'); a(f's_cselect_b32 s{sT1}, {OOB:#x}, s{sT1}')
    a(f's_cmp_eq_u32 s{sR}, 0'); a(f's_cselect_b32 s{sT2}, 1, 0')
    a(f'v_add_u32 v{v+2}, s{sT0}, v{v+1}'); a(f'v_add_u32 v{v+3}, s{sT1}, v{v+1}')
    a(f'v_cmp_gt_u32 vcc, 16, v{v}'); a(f's_cmp_eq_u32 s{sR}, 0'); a(f's_cselect_b64 s[{sPA}:{sPA+1}], vcc, 0')
    a(f'v_cndmask_b32 v{vSTO}, v{v+2}, v{v+3}, s[{sPA}:{sPA+1}]')
    a(f'v_mov_b32 v{v+3}, {OOB:#x}'); a(f'v_cmp_le_u32 vcc, 36, v{vLANE}'); a(f'v_cndmask_b32 v{vSTO}, v{vSTO}, v{v+3}, vcc')
    if layer==0:
        for c in range(8):
            a(f's_mov_b32 s{sT0}, {c*2048}')
            vm.issue(f'buffer_load_dwordx2 v[{vSD+2*c}:{vSD+2*c+1}], v{vSTO}, s[{S_WS}:{S_WS+3}], s{sT0} offen sc1','st')
    else:
        a(f'v_mov_b32 v{v+2}, 2048'); a(f'v_mov_b32 v{v+3}, 128'); a(f'v_cndmask_b32 v{v+2}, v{v+2}, v{v+3}, s[{sPA}:{sPA+1}]')
        for c in range(8):
            vm.issue(f'buffer_load_dwordx2 v[{vSD+2*c}:{vSD+2*c+1}], v{vSTO}, s[{S_WS}:{S_WS+3}], 0 offen sc1','st')
            if c<7: a(f'v_add_u32 v{vSTO}, v{vSTO}, v{v+2}')

def ln_finalize_list(s, q, t):
    o=[f'v_mul_f32 v{s}, {f2u(1.0/640):#x}, v{s}', f'v_mul_f32 v{q}, {f2u(1.0/640):#x}, v{q}',
       f'v_fma_f32 v{q}, -v{s}, v{s}, v{q}', f'v_max_f32 v{q}, 0, v{q}',
       f'v_cvt_pk_bf16_f32 v{t}, v{s}, v{q}', f'v_lshlrev_b32 v{s}, 16, v{t}', f'v_and_b32 v{q}, 0xffff0000, v{t}',
       f'v_add_f32 v{q}, {f2u(1e-5):#x}, v{q}', f'v_cvt_pk_bf16_f32 v{t}, v{q}, v{q}', f'v_and_b32 v{q}, 0xffff0000, v{t}',
       f'v_sqrt_f32 v{q}, v{q}', f'v_cvt_pk_bf16_f32 v{t}, v{q}, v{q}', f'v_and_b32 v{q}, 0xffff0000, v{t}',
       f'v_rcp_f32 v{q}, v{q}', f'v_xor_b32 v{s}, 0x80000000, v{s}']
    return o

def stats_reduce_list():
    d=vSD; o=[]
    for c in (1,2,3): o+= [f'v_add_f32 v{d+2*c-2 if False else d}, v{d}, v{d+2*c}', f'v_add_f32 v{d+1}, v{d+1}, v{d+2*c+1}']
    for c in (5,6,7): o+= [f'v_add_f32 v{d+8}, v{d+8}, v{d+2*c}', f'v_add_f32 v{d+9}, v{d+9}, v{d+2*c+1}']
    o+=[f'v_add_f32 v{d}, v{d}, v{d+8}', f'v_add_f32 v{d+1}, v{d+1}, v{d+9}']
    o+=ln_finalize_list(d,d+1,d+2)
    o+=[f's_mul_i32 s{sT3}, s{sW}, 288', f's_add_u32 s{sT3}, s{sT3}, {L_STAT}', f'v_lshlrev_b32 v{d+3}, 3, v{vLANE}', f'v_add_u32 v{d+3}, s{sT3}, v{d+3}',
        f's_mov_b32 exec_lo, 0xffffffff\ns_mov_b32 exec_hi, 0xf\nds_write_b64 v{d+3}, v[{d}:{d+1}]\ns_mov_b64 exec, -1']
    return o

def halo_setup(a, layer):
    if layer==0:
        a(f's_lshl_b32 s{sHS}, s{sG}, 8'); a(f's_lshl_b32 s{sT0}, s{sR}, 7'); a(f's_add_u32 s{sHS}, s{sHS}, s{sT0}')
        a(f's_cmp_eq_u32 s{sHS}, 0'); a(f's_cselect_b32 s{sT1}, 1, 0')
        a(f's_sub_u32 s{sHS}, s{sHS}, 16'); a(f's_mul_i32 s{sHS}, s{sHS}, 1280')
        a(f's_cmp_eq_u32 s{sT1}, 1'); a(f's_cselect_b32 s{sHS}, {OOB:#x}, s{sHS}')

def halo_dma(layer):
    out=[]
    if layer==0:
        out.append((f's_mul_i32 s{sT0}, s{sW}, {5*64}',0)); out.append((f's_add_u32 s{sT0}, s{sT0}, s{sHS}',0))
        out.append((f's_mul_i32 s{sT1}, s{sW}, 5120',0))
        for i in range(5):
            out.append((f's_add_u32 m0, s{sT1}, {HALO+i*1024}',0))
            out.append((f'buffer_load_dwordx4 v{vXA}, s[{S_X}:{S_X+3}], s{sT0} offen lds',1))
            if i<4: out.append((f's_add_u32 s{sT0}, s{sT0}, 64',0))
        return out
    v=vT
    out.append((f's_mul_i32 s{sT0}, s{sMODE}, {SAFEOFF}',0)); out.append((f's_add_u32 s{sT0}, s{sT0}, s{sGB}',0)); out.append((f's_add_u32 s{sT0}, s{sT0}, {R_XT1+3*40960}',0))
    out.append((f's_sub_u32 s{sT1}, s{sGB}, {GRP_SZ}',0)); out.append((f's_add_u32 s{sT1}, s{sT1}, {G_HX}',0))
    out.append((f's_cmp_eq_u32 s{sG}, 0',0)); out.append((f's_cselect_b32 s{sT1}, {OOB:#x}, s{sT1}',0))
    out.append((f's_cmp_eq_u32 s{sR}, 0',0)); out.append((f's_cselect_b32 s{sT0}, s{sT1}, s{sT0}',0))
    out.append((f's_cselect_b32 s{sT3}, 1024, 0',0)); out.append((f's_cselect_b64 vcc, -1, 0',0))
    out.append((f'v_cndmask_b32 v{v+2}, v{vXB}, v{vL16}, vcc',0))
    out.append((f's_cmp_eq_u32 s{sT3}, 0',0)); out.append((f's_cselect_b32 s{sT3}, 2048, s{sT3}',0))
    out.append((f's_mul_i32 s{sT1}, s{sW}, 5',0)); out.append((f's_mul_i32 s{sT1}, s{sT1}, s{sT3}',0)); out.append((f's_add_u32 s{sT0}, s{sT0}, s{sT1}',0))
    out.append((f's_mul_i32 s{sT1}, s{sW}, 5120',0))
    for i in range(5):
        out.append((f's_add_u32 m0, s{sT1}, {HALO+i*1024}',0))
        out.append((f'buffer_load_dwordx4 v{v+2}, s[{S_WS}:{S_WS+3}], s{sT0} offen sc1 lds',1))
        if i<4: out.append((f's_add_u32 s{sT0}, s{sT0}, s{sT3}',0))
    return out

def p1_kloop(a, vm, layer, hooks={}):
    a.comment(f'==== P1 k-loop layer {layer} ====')
    F=Fill(a,vm)
    if layer==0:
        a(f'v_add_u32 v{vL16W}, 20480, v{vL16}')
        a(f's_lshl_b32 s{sWQ}, s{sC16}, 3'); a(f's_lshl_b32 s{sT0}, s{sW}, 1'); a(f's_add_u32 s{sWQ}, s{sWQ}, s{sT0}'); a(f's_mul_i32 s{sWQ}, s{sWQ}, 20480')
        for i in range(4): a(f'v_mov_b32 v{vONES+i}, 0x3f803f80')
        halo_setup(a,0)
        if 'pre' in hooks: hooks['pre'](a,vm)
        lw=L('QW')
        a(f's_cmp_lg_u32 s{sW}, 0'); a(f's_cbranch_scc1 {lw}')
        a(f's_lshl_b32 s{sPB}, s{sC16}, 7'); a(f's_add_u32 s{sPB}, s{sPB}, {F_QF}'); a(f's_add_u32 s{sPE}, s{sN}, 1')
        a(f's_mov_b32 s{sMSK}, 0xfffff'); a(f's_mov_b32 s{sMSK+1}, 0'); a(f'v_lshlrev_b32 v{vPO}, 2, v{vLANE}')
        spin_check(a,vm,vPO,sPB,sPE,1,False,OPT.get('qsleep',2))
        a.label(lw)
        vm.wait_all(); a('s_barrier')
        stamp(a,'qkv_ready')
        for t in range(6): emit_list(a,vm,w_load(t),('W',t))
    poll_setup(a,layer)
    vm.wait(('x',0)); a('s_barrier')
    def rd(t,rb):
        n=t//2; tt=t%2
        return f'ds_read_b128 v[{vX+4*rb}:{vX+4*rb+3}], v{vL16b} offset:{XR-65536+(n%XR_N)*XR_SLOT+tt*8192+rb*1024}'
    for rb in range(8): a(rd(0,rb))
    for t in range(20):
        if t%2==1 and t<19:
            n1=(t+1)//2
            vm.wait(('x',n1)); a('s_barrier')
            if n1+2<10: F.addl(x_slot_dma(layer,n1+2),('x',n1+2))
        if layer==0 and t+6<20: F.addl(w_load(t+6),('W',t+6))
        if t==8:
            F.add(sf_issue_text() if layer==0 else poll_issue_text(vPO,sPB),'poll')
        if t==12:
            F.flush()
            if layer==0: sf_check(a,vm)
            else: spin_check(a,vm,vPO,sPB,sPE,1,True)
            F.addl(halo_dma(layer),'halo')
        if t==14:
            F.flush(); stats_loads(a,vm,layer)
        if t==17:
            vm.wait('st')
            for tx in stats_reduce_list(): F.add(tx)
        if t in hooks:
            if t not in (16,18): F.flush()
            hooks[t](a,vm,F)
        if layer==0:
            vm.wait(('W',t))
            for jb in range(2):
                c = '0' if t==0 else f'v[{vCSQ+4*jb}:{vCSQ+4*jb+3}]'
                a(f'v_mfma_f32_16x16x32_bf16 v[{vCSQ+4*jb}:{vCSQ+4*jb+3}], a[{80*jb+4*t}:{80*jb+4*t+3}], v[{vONES}:{vONES+3}], {c}')
        for rb in range(8):
            if rb%2==0: a(f's_waitcnt lgkmcnt({6 if t<19 else 6-rb})')
            for jb in range(2):
                acc=vACC+8*rb+4*jb
                c='0' if t==0 else f'v[{acc}:{acc+3}]'
                a(f'v_mfma_f32_16x16x32_bf16 v[{acc}:{acc+3}], a[{80*jb+4*t}:{80*jb+4*t+3}], v[{vX+4*rb}:{vX+4*rb+3}], {c}')
                if jb==0: F.emit(2)
            if t<19: a(rd(t+1,rb))
            F.emit(1)
    F.flush()

def stg_addr_setup(a, st):
    v=vT
    for jb in range(2):
        a(f'v_lshrrev_b32 v{v}, 4, v{vLANE}'); a(f's_lshl_b32 s{st}, s{sW}, 3'); a(f's_add_u32 s{st}, s{st}, {4*jb}')
        a(f'v_add_u32 v{v}, s{st}, v{v}')
        a(f'v_mul_u32_u24 v{v+1}, 26, v{v}'); a(f'v_lshrrev_b32 v{v+1}, 8, v{v+1}')
        a(f'v_mul_u32_u24 v{v+2}, 10, v{v+1}'); a(f'v_sub_u32 v{v+2}, v{v}, v{v+2}')
        a(f'v_cmp_le_u32 vcc, 5, v{v+2}'); a(f'v_cndmask_b32 v{v+3}, 0, 1, vcc')
        a(f'v_lshlrev_b32 v{v+4}, 3, v{v+2}')
        a(f'v_lshlrev_b32 v{v+3}, 3, v{v+3}'); a(f'v_add_u32 v{v+3}, v{v+3}, v{v+4}')
        a(f'v_add_u32 v{v+5}, {F_KA}, v{v+3}'); a(f'v_add_u32 v{v+4}, {F_VA}, v{v+4}')
        a(f'v_cmp_eq_u32 vcc, 1, v{v+1}'); a(f'v_cndmask_b32 v{v+3}, v{v+3}, v{v+5}, vcc')
        a(f'v_cmp_eq_u32 vcc, 2, v{v+1}'); a(f'v_cndmask_b32 v{v+3}, v{v+3}, v{v+4}, vcc')
        a(f'v_mov_b32 v{v+4}, 40'); a(f'v_cmp_eq_u32 vcc, 30, v{v}'); a(f'v_cndmask_b32 v{v+3}, v{v+3}, v{v+4}, vcc')
        a(f'v_mov_b32 v{v+4}, 88'); a(f'v_cmp_eq_u32 vcc, 31, v{v}'); a(f'v_cndmask_b32 v{v+3}, v{v+3}, v{v+4}, vcc')
        a(f'v_and_b32 v{v+4}, 15, v{vLANE}'); a(f'v_mul_u32_u24 v{v+4}, {SP}, v{v+4}')
        a(f'v_add_u32 v{v+3}, v{v+3}, v{v+4}'); a(f'v_add_u32 v{vSTG0+jb}, {STG}, v{v+3}')

def epi_rb(rb, packed):
    out=[]
    row0 = 0 if rb==8 else 16+16*rb
    sm=vSM+2*rb
    for jb in range(2):
        acc=vACC+8*rb+4*jb; e=vE+2*jb
        if packed:
            for h in range(2):
                p=acc+2*h; cs=vCSQ+4*jb+2*h
                out.append(f'v_pk_fma_f32 v[{p}:{p+1}], v[{cs}:{cs+1}], v[{sm}:{sm+1}], v[{p}:{p+1}] op_sel_hi:[1,0,1]')
            for h in range(2):
                p=acc+2*h
                out.append(f'v_pk_mul_f32 v[{p}:{p+1}], v[{p}:{p+1}], v[{sm}:{sm+1}] op_sel:[0,1] op_sel_hi:[1,1]')
        else:
            for i in range(4): out.append(f'v_fma_f32 v{acc+i}, v{vCSQ+4*jb+i}, v{sm}, v{acc+i}')
            for i in range(4): out.append(f'v_mul_f32 v{acc+i}, v{acc+i}, v{sm+1}')
        out.append(f'v_cvt_pk_bf16_f32 v{e}, v{acc}, v{acc+1}')
        out.append(f'v_cvt_pk_bf16_f32 v{e+1}, v{acc+2}, v{acc+3}')
        out.append(f'ds_write_b64 v{vSTG0+jb}, v[{e}:{e+1}] offset:{row0*SP}')
    return out

vQA=24; vQB=25; vK=26; vV=27; vMB=28; vMS=36; vAT=64
CEXP=f2u(20**-0.5*1.4426950408889634)

def attn_const_build(a):
    v=60; o=40
    a(f'v_and_b32 v{v}, 15, v{vLANE}'); a(f'v_lshrrev_b32 v{v+1}, 4, v{vLANE}')
    a(f'v_mul_u32_u24 v{v+2}, {SP}, v{v}'); a(f'v_add_u32 v{v+2}, {STG}, v{v+2}')
    a(f'v_lshlrev_b32 v{v+3}, 4, v{v+1}'); a(f'v_add_u32 v{o+2}, v{v+2}, v{v+3}')
    a(f'v_cmp_eq_u32 vcc, 3, v{v+1}')
    a(f'v_add_u32 v{o}, {F_Z}, v{v+2}'); a(f'v_cndmask_b32 v{o}, v{o+2}, v{o}, vcc')
    a(f'v_add_u32 v{o+1}, {F_QB}, v{o+2}'); a(f'v_add_u32 v{v+3}, {F_Z}, v{v+2}'); a(f'v_cndmask_b32 v{o+1}, v{o+1}, v{v+3}, vcc')
    a(f'v_bfe_u32 v{v+2}, v{vLANE}, 2, 2'); a(f'v_lshlrev_b32 v{v+3}, 2, v{v+1}'); a(f'v_add_u32 v{v+2}, v{v+2}, v{v+3}')
    a(f'v_mul_u32_u24 v{v+2}, {SP}, v{v+2}'); a(f'v_and_b32 v{v+3}, 3, v{vLANE}'); a(f'v_lshlrev_b32 v{v+3}, 3, v{v+3}')
    a(f'v_add_u32 v{v+2}, v{v+2}, v{v+3}'); a(f'v_add_u32 v{o+3}, {STG}, v{v+2}')
    a(f'v_lshlrev_b32 v{v+1}, 2, v{v+1}'); a(f'v_sub_u32 v{v}, v{v}, v{v+1}')
    a(f'v_mov_b32 v{v+3}, 0xf149f2ca')
    for kb in range(2):
        for i in range(4):
            a(f'v_add_u32 v{v+1}, {16-16*kb-i}, v{v}'); a(f'v_and_b32 v{v+2}, 0xfffffff1, v{v+1}')
            a(f'v_cmp_eq_u32 vcc, 0, v{v+2}'); a(f'v_cndmask_b32 v{o+4+4*kb+i}, v{v+3}, 0, vcc')
    a(f'v_add_u32 v{v}, {L_ATC}, v{vL16}')
    for k in range(3): a(f'ds_write_b128 v{v}, v[{o+4*k}:{o+4*k+3}] offset:{k*1024}')

class BG:
    def __init__(self,a,vm,items,rate): self.a=a; self.vm=vm; self.q=list(items); self.rate=rate; self.n=0
    def e(self,text):
        self.a(text); self.n+=1
        if self.q and self.n>=self.rate and not text.startswith('s_mov_b32 exec') and not self.hold:
            self.n=0; self.pop()
    hold=False
    def pop(self):
        while self.q:
            t,tag=self.q.pop(0)
            if tag is None: self.a(t)
            else:
                self.vm.issue(t,tag); break
    def flush(self):
        while self.q: self.pop()

def p1_tail(a, vm, bg_items):
    a.comment('==== P1 tail ====')
    vm.wait('halo')
    a('s_waitcnt lgkmcnt(0)'); a('s_barrier')
    B=BG(a,vm,bg_items,OPT.get('bgrate',10))
    v=vT
    a(f'v_and_b32 v{v+6}, 15, v{vLANE}'); a(f'v_lshlrev_b32 v{v+6}, 3, v{v+6}'); a(f'v_add_u32 v{v+6}, {L_STAT}, v{v+6}')
    for rb in range(9):
        row0 = 0 if rb==8 else 16+16*rb
        a(f'ds_read_b64 v[{vSM+2*rb}:{vSM+2*rb+1}], v{v+6} offset:{row0*8}')
    def rdh(t): return f'ds_read_b128 v[{vX+4*(t%8)}:{vX+4*(t%8)+3}], v{vL16} offset:{HALO+t*1024}'
    for t in range(6): a(rdh(t))
    a(f's_mul_i32 s{sT0}, s{sW}, {36*SP}'); a(f's_add_u32 s{sT0}, s{sT0}, {STG}')
    a(f'v_mul_u32_u24 v{v}, {SP}, v{vLANE}'); a(f'v_add_u32 v{v}, s{sT0}, v{v}')
    for i in range(4): a(f'v_mov_b32 v{v+2+i}, 0')
    set_exec(a,0xffffffff,0xf)
    a(f'ds_write_b64 v{v}, v[{v+2}:{v+3}] offset:{F_KA+40}'); a(f'ds_write_b64 v{v}, v[{v+2}:{v+3}] offset:{F_KB+40}')
    a(f'ds_write_b64 v{v}, v[{v+2}:{v+3}] offset:{F_Z}'); a(f'ds_write_b64 v{v}, v[{v+2}:{v+3}] offset:{F_Z+8}')
    full_exec(a)
    NPL=OPT.get('npl',3)
    fill=[]
    for rb in range(NPL): fill+=epi_rb(rb,False)
    fi=0; nf=len(fill)
    for t in range(20):
        later=min(5,19-t)
        a(f's_waitcnt lgkmcnt({later})')
        for jb in range(2):
            acc=vACC+64+4*jb
            c='0' if t==0 else f'v[{acc}:{acc+3}]'
            a(f'v_mfma_f32_16x16x32_bf16 v[{acc}:{acc+3}], a[{80*jb+4*t}:{80*jb+4*t+3}], v[{vX+4*(t%8)}:{vX+4*(t%8)+3}], {c}')
            k=min(nf,(nf*(2*t+jb+1)+39)//40)
            while fi<k: a(fill[fi]); fi+=1
        if t+6<20: a(rdh(t+6))
    a(f'v_add_u32 v{v+6}, {L_ATC}, v{vL16}')
    for rb in list(range(NPL,8))+[8]:
        for i in epi_rb(rb,True): a(i)
    a(f'ds_read_b128 v[{vQA}:{vQA+3}], v{v+6}'); a(f'ds_read_b128 v[{vMB}:{vMB+3}], v{v+6} offset:1024'); a(f'ds_read_b128 v[{vMB+4}:{vMB+7}], v{v+6} offset:2048')
    assert sum(1 for t,tag in B.q if tag==('ring',0))==5, 'halo region overwritten too early'
    a('s_waitcnt lgkmcnt(0)'); a('s_barrier')
    return B

def attention(a, vm, BGQ):
    a.comment('==== attention ====')
    a(f's_mul_i32 s{sT0}, s{sW}, {32*SP}')
    for r in (vQA,vQB,vK,vV): a(f'v_add_u32 v{r}, s{sT0}, v{r}')
    def R(uu,hd): return vAT+48*(2*uu+hd)
    units=[(uu,hd) for uu in range(2) for hd in range(2)]
    for uu,hd in units:
        B=R(uu,hd); fk=F_KA if hd==0 else F_KB
        for h2 in range(2): a(f'ds_read_b64 v[{B+2*h2}:{B+2*h2+1}], v{vQA if hd==0 else vQB} offset:{(16+16*uu)*SP+8*h2}')
        for h2 in range(2): a(f'ds_read_b64 v[{B+4+2*h2}:{B+5+2*h2}], v{vK} offset:{(16*uu)*SP+fk+8*h2}')
        for h2 in range(2): a(f'ds_read_b64 v[{B+8+2*h2}:{B+9+2*h2}], v{vK} offset:{(16*uu+16)*SP+fk+8*h2}')
    a(f's_or_b32 s{sT0}, s{sG}, s{sR}'); a(f's_or_b32 s{sT0}, s{sT0}, s{sW}'); a(f's_cmp_eq_u32 s{sT0}, 0'); a(f's_cselect_b64 vcc, -1, 0')
    a(f'v_mov_b32 v60, 0xf149f2ca')
    for i in range(4): a(f'v_cndmask_b32 v{vMS+i}, v{vMB+i}, v60, vcc')
    a(f'v_mov_b32 v56, {CEXP:#x}')
    for i in range(4): a(f'v_mov_b32 v{52+i}, 0x3f803f80')
    for idx,(uu,hd) in enumerate(units):
        B=R(uu,hd); m0 = vMS if uu==0 else vMB
        a(f's_waitcnt lgkmcnt({min(15,18-6*idx)})')
        a(f'v_mfma_f32_16x16x32_bf16 v[{B+20}:{B+23}], v[{B+4}:{B+7}], v[{B}:{B+3}], v[{m0}:{m0+3}]')
        a(f'v_mfma_f32_16x16x32_bf16 v[{B+24}:{B+27}], v[{B+8}:{B+11}], v[{B}:{B+3}], v[{vMB+4}:{vMB+7}]')
    for uu,hd in units:
        B=R(uu,hd); fv=F_VA if hd==0 else F_VB
        for db in range(2):
            a(f'ds_read_b64_tr_b16 v[{B+12+4*db}:{B+13+4*db}], v{vV} offset:{(16*uu)*SP+fv+32*db}')
            a(f'ds_read_b64_tr_b16 v[{B+14+4*db}:{B+15+4*db}], v{vV} offset:{(16*uu+16)*SP+fv+32*db}')
    for uu,hd in units:
        B=R(uu,hd); s=B+20; t=B+44
        BGQ.e(f'v_max3_f32 v{t}, v{s}, v{s+1}, v{s+2}'); BGQ.e(f'v_max3_f32 v{t+1}, v{s+4}, v{s+5}, v{s+6}')
    for uu,hd in units:
        B=R(uu,hd); s=B+20; t=B+44
        BGQ.e(f'v_max3_f32 v{t}, v{t}, v{s+3}, v{s+7}')
    for uu,hd in units:
        t=R(uu,hd)+44; BGQ.e(f'v_max_f32 v{t}, v{t}, v{t+1}')
    for sw in ('v_permlane32_swap_b32','v_permlane16_swap_b32'):
        for uu,hd in units:
            t=R(uu,hd)+44; BGQ.e(f'v_mov_b32 v{t+1}, v{t}')
        for uu,hd in units:
            t=R(uu,hd)+44; BGQ.e(f'{sw} v{t}, v{t+1}')
        for uu,hd in units:
            t=R(uu,hd)+44; BGQ.e(f'v_max_f32 v{t}, v{t}, v{t+1}')
    for uu,hd in units:
        t=R(uu,hd)+44; BGQ.e(f'v_mul_f32 v{t}, v56, v{t}')
    for h in range(4):
        for uu,hd in units:
            B=R(uu,hd); s=B+20; t=B+44
            BGQ.e(f'v_pk_fma_f32 v[{s+2*h}:{s+2*h+1}], v[{s+2*h}:{s+2*h+1}], v[56:57], v[{t}:{t+1}] op_sel_hi:[1,0,0] neg_lo:[0,0,1] neg_hi:[0,0,1]')
    for uu,hd in units:
        B=R(uu,hd); s=B+20
        for i in range(8): BGQ.e(f'v_exp_f32 v{s+i}, v{s+i}')
        if (uu,hd)!=units[0]:
            pu,ph=units[units.index((uu,hd))-1]; Bp=R(pu,ph); sp=Bp+20
            for h in range(4): BGQ.e(f'v_cvt_pk_bf16_f32 v{Bp+28+h}, v{sp+2*h}, v{sp+2*h+1}')
    Bp=R(*units[-1]); sp=Bp+20
    for h in range(4): BGQ.e(f'v_cvt_pk_bf16_f32 v{Bp+28+h}, v{sp+2*h}, v{sp+2*h+1}')
    a('s_waitcnt lgkmcnt(0)')
    for uu,hd in units:
        B=R(uu,hd)
        a(f'v_mfma_f32_16x16x32_bf16 v[{B+40}:{B+43}], v[52:55], v[{B+28}:{B+31}], 0')
        a(f'v_mfma_f32_16x16x32_bf16 v[{B+32}:{B+35}], v[{B+12}:{B+15}], v[{B+28}:{B+31}], 0')
        a(f'v_mfma_f32_16x16x32_bf16 v[{B+36}:{B+39}], v[{B+16}:{B+19}], v[{B+28}:{B+31}], 0')
    a(f's_add_u32 s{sT0}, s{sLB}, s{rO_st}'); a(f's_add_u32 s{sT1}, s{sLB}, s{rO_tl}')
    a(f's_add_u32 s{sT2}, s{sT0}, 20480'); a(f's_add_u32 s{sT3}, s{sT1}, 20480')
    for uu,hd in units:
        B=R(uu,hd); a(f'v_rcp_f32 v{B+44}, v{B+40}')
    vm_main=[40,44]; vm_tail=[48,60]
    for uu in range(2):
        for hd in range(2):
            B=R(uu,hd)
            for p in (32,34,36,38):
                BGQ.e(f'v_pk_mul_f32 v[{B+p}:{B+p+1}], v[{B+p}:{B+p+1}], v[{B+44}:{B+45}] op_sel_hi:[1,0]')
        A=R(uu,0); Bq=R(uu,1); m=vm_main[uu]; tl=vm_tail[uu]
        BGQ.e(f'v_cvt_pk_bf16_f32 v{m}, v{A+32}, v{A+33}'); BGQ.e(f'v_cvt_pk_bf16_f32 v{m+1}, v{A+34}, v{A+35}')
        BGQ.e(f'v_cvt_pk_bf16_f32 v{m+2}, v{Bq+32}, v{Bq+33}'); BGQ.e(f'v_cvt_pk_bf16_f32 v{m+3}, v{Bq+34}, v{Bq+35}')
        vm.issue(f'buffer_store_dwordx4 v[{m}:{m+3}], v{vL16}, s[{S_WS}:{S_WS+3}], s{sT0 if uu==0 else sT2} offen','ost')
        BGQ.e(f'v_cvt_pk_bf16_f32 v{tl}, v{A+36}, v{A+37}'); BGQ.e(f'v_cvt_pk_bf16_f32 v{tl+1}, v{A+38}, v{A+39}')
        BGQ.e(f'v_cvt_pk_bf16_f32 v{tl+2}, v{Bq+36}, v{Bq+37}'); BGQ.e(f'v_cvt_pk_bf16_f32 v{tl+3}, v{Bq+38}, v{Bq+39}')
    BGQ.flush()
    set_exec(a,0xffff,0)
    vm.issue(f'buffer_store_dwordx4 v[48:51], v{vL16}, s[{S_WS}:{S_WS+3}], s{sT1} offen','ost')
    vm.issue(f'buffer_store_dwordx4 v[60:63], v{vL16}, s[{S_WS}:{S_WS+3}], s{sT3} offen','ost')
    full_exec(a)
```

```python
from asmlib import *
from layout import *
from regs import *
import p1, startup
from p1 import ln_finalize_list

def lds_base(addr):
    if addr<65536: return vL16, addr
    if addr<131072: return vL16b, addr-65536
    return vL16c, addr-131072
def vprime(v,r): return (v+4*r)%7

def const_setup(a):
    t0,t1=sT0,sT1
    a(f's_mul_i32 s{sM5}, s{sW}, 5120')
    a(f's_mul_i32 s{sWoS}, s{sC8}, {100*KB}'); a(f's_add_u32 s{sWoS}, s{sWoS}, {WO}'); a(f's_add_u32 s{sWoS}, s{sWoS}, s{sM5}')
    a(f's_mul_i32 s{sU0}, s{sC16}, 7'); a(f's_mul_i32 s{t0}, s{sC16}, 6'); a(f's_add_u32 s{t0}, s{t0}, 12')
    a(f's_cmp_lt_u32 s{sC16}, 12'); a(f's_cselect_b32 s{sU0}, s{sU0}, s{t0}')
    a(f's_mul_i32 s{sDS}, s{sC8}, {270*KB}'); a(f's_add_u32 s{sDS}, s{sDS}, {WD}'); a(f's_add_u32 s{sDS}, s{sDS}, s{sM5}')
    a(f's_add_u32 s{sD13R}, s{sDS}, {13*SLOT}'); a(f's_cmp_lt_u32 s{sW}, 2'); a(f's_cselect_b32 s{sD13}, s{sD13R}, {OOB:#x}')
    a(f's_add_u32 s{sDEND}, s{sDS}, {14*SLOT}')
    a(f's_mul_i32 s{sROT}, s{sQ}, 10'); a(f's_mul_i32 s{sROT}, s{sROT}, 21846'); a(f's_lshr_b32 s{sROT}, s{sROT}, 16')
    if not OPT.get('rot4',1): a(f's_mov_b32 s{sROT}, 0')
    a(f's_lshl_b32 s{sFLA}, s{sG}, 8'); a(f's_add_u32 s{sFLA}, s{sFLA}, {F_BF}')
    a(f's_mul_i32 s{sE2}, s{sU0}, {40*KB}'); a(f's_add_u32 s{sE2}, s{sE2}, {WG}'); a(f's_add_u32 s{sE2}, s{sE2}, s{sM5}')
    rot=OPT.get('rot3',0)
    for v in range(7):
        d=(vprime(v,1)-v) if rot else 0
        a(f's_mul_i32 s{t0}, s{sR}, {d}'); a(f's_add_i32 s{t0}, s{t0}, {v}')
        a(f's_mul_i32 s{t1}, s{t0}, {40*KB}'); a(f's_add_u32 s{sGU+v}, s{sE2}, s{t1}')
        a(f's_add_u32 s{sE0}, s{sU0}, s{t0}')
        a(f's_lshr_b32 s{sE1}, s{sE0}, 1'); a(f's_lshl_b32 s{sE1}, s{sE1}, 10')
        a(f's_and_b32 s{sE0}, s{sE0}, 1'); a(f's_lshl_b32 s{sE0}, s{sE0}, 9'); a(f's_add_u32 s{sHR+v}, s{sE0}, s{sE1}')
        a(f's_cmp_eq_u32 s{t0}, 6'); a(f's_cselect_b32 s{sE0}, 1, 0')
        a(f's_cmp_ge_u32 s{sC16}, 12'); a(f's_cselect_b32 s{sE0}, s{sE0}, 0')
        a(f's_cmp_eq_u32 s{sE0}, 1')
        a(f's_cselect_b32 s{sGU+v}, {OOB:#x}, s{sGU+v}'); a(f's_cselect_b32 s{sHR+v}, {OOB:#x}, s{sHR+v}')
    a(f's_lshl_b32 s{t0}, s{sR}, 3'); a(f's_lshl_b32 s{t1}, s{sW}, 1'); a(f's_add_u32 s{t0}, s{t0}, s{t1}'); a(f's_mul_i32 s{t0}, s{t0}, 20480')
    a(f's_lshl_b32 s{t1}, s{sC16}, 10'); a(f's_add_u32 s{rO_st}, s{t0}, s{t1}')
    a(f's_lshr_b32 s{t1}, s{sC16}, 2'); a(f's_add_u32 s{t1}, s{t1}, 16'); a(f's_lshl_b32 s{t1}, s{t1}, 10'); a(f's_add_u32 s{t0}, s{t0}, s{t1}')
    a(f's_and_b32 s{t1}, s{sC16}, 3'); a(f's_lshl_b32 s{t1}, s{t1}, 8'); a(f's_add_u32 s{rO_tl}, s{t0}, s{t1}')
    assert R_O==0
    a(f's_lshl_b32 s{t0}, s{sQ}, 2'); a(f's_add_u32 s{t0}, s{t0}, s{sW}')
    a(f's_mul_i32 s{rO_ld}, s{t0}, 20480')
    a(f's_mul_i32 s{rH_ld}, s{t0}, {54*KB}'); a(f's_add_u32 s{rH_ld}, s{rH_ld}, {R_H}')
    a(f's_lshr_b32 s{t0}, s{t0}, 1'); a(f's_mul_i32 s{rXT_st}, s{t0}, 40960')
    a(f's_mul_i32 s{t1}, s{sC8}, 5120'); a(f's_add_u32 s{rXT_st}, s{rXT_st}, s{t1}')
    a(f's_and_b32 s{t1}, s{sW}, 1'); a(f's_lshl_b32 s{t1}, s{t1}, 8'); a(f's_add_u32 s{rXT_st}, s{rXT_st}, s{t1}')
    a(f's_lshl_b32 s{rST_st}, s{sC8}, 11'); a(f's_lshl_b32 s{t1}, s{sQ}, 9'); a(f's_add_u32 s{rST_st}, s{rST_st}, s{t1}')
    a(f's_lshl_b32 s{t1}, s{sW}, 7'); a(f's_add_u32 s{rST_st}, s{rST_st}, s{t1}')
    a(f's_lshl_b32 s{t0}, s{sR}, 2'); a(f's_add_u32 s{t0}, s{t0}, s{sW}')
    a(f's_mul_i32 s{rX3_ld}, s{t0}, 40960')
    a(f's_lshl_b32 s{rST3_ld}, s{t0}, 8')
    a(f's_mul_i32 s{rH_st}, s{t0}, {2*54*KB}'); a(f's_add_u32 s{rH_st}, s{rH_st}, {R_H}')

def layer_setup(a):
    a(f's_mov_b32 s{sLBT}, s{sGB}')
    a(f's_mul_i32 s{sLB}, s{sLAYER}, {LSTRIDE}'); a(f's_add_u32 s{sLB}, s{sLB}, {SAFEOFF}'); a(f's_mul_i32 s{sLB}, s{sLB}, s{sMODE}'); a(f's_add_u32 s{sLB}, s{sLB}, s{sGB}')

sOOB=100
def d_next(dst, special):
    o=[]
    if special: o+=[(f's_cmp_eq_u32 s{sDJ}, s{sD13R}',0),(f's_cselect_b32 s{dst}, s{sD13}, s{sDJ}',0)]
    else: o+=[(f's_mov_b32 s{dst}, s{sDJ}',0)]
    if OPT.get('x_noWd'): o+=[(f's_mov_b32 s{dst}, {OOB:#x}',0)]
    o+=[(f's_add_u32 s{sDJ}, s{sDJ}, {SLOT}',0),(f's_cmp_eq_u32 s{sDJ}, s{sDEND}',0),(f's_cselect_b32 s{sDJ}, s{sDS}, s{sDJ}',0)]
    return o
def ring_issue(n):
    pos=(n%NRING)*SLOT
    out=[]
    if n<5: out.append((f's_add_u32 s{sE0}, s{sWoS}, {n*SLOT}',0))
    elif n<19: out.append((f's_add_u32 s{sE0}, s{sGU+(n-5)//2}, {((n-5)%2)*SLOT}',0))
    else: out+=d_next(sE0,True)
    out.append((f's_add_u32 m0, s{sM5}, {pos}',0))
    nt=' nt' if (OPT.get('wnt',0)==1 or (OPT.get('wnt',0)==2 and 5<=n<19)) else ''
    for i in range(4):
        out.append((f'buffer_load_dwordx4 v{vL16}, s[{S_WS}:{S_WS+3}], s{sE0} offen offset:{i*1024}{nt} lds',1))
    out.append((f's_add_u32 m0, s{sM5}, {pos+4096}',0)); out.append((f's_add_u32 s{sE0}, s{sE0}, 4096',0))
    out.append((f'buffer_load_dwordx4 v{vL16}, s[{S_WS}:{S_WS+3}], s{sE0} offen{nt} lds',1))
    return out
def ring_emit(a,vm,n):
    for t,isv in ring_issue(n):
        if isv: vm.issue(t,('ring',n))
        else: a(t)
class Ring:
    def __init__(self): self.occ=[None]*NRING; self.next=0; self.last=32
    def reset(self): self.occ=[None]*NRING; self.next=0
    def release(self,n):
        p=n%NRING; assert self.occ[p]==n,(n,self.occ); self.occ[p]=None
    def take(self,maxn,limit=99):
        out=[]
        while len(out)<maxn and self.next<=min(self.last,limit) and self.occ[self.next%NRING] is None:
            self.occ[self.next%NRING]=self.next; out.append(self.next); self.next+=1
        return out
    def force(self,n):
        assert self.occ[n%NRING] is None,(n,self.occ); self.occ[n%NRING]=n
RING=Ring()

SAFE_BLOCKS=[]
def slot_src(n):
    if n<5: return sWoS, n*SLOT
    if n<19: return sGU+(n-5)//2, ((n-5)%2)*SLOT
    if n<32: return sDS, (n-19)*SLOT
    raise ValueError
def side_scalar(a, side):
    assert len(side)==3
    for k,n in enumerate(side):
        if n<19:
            b,c=slot_src(n); a(f's_add_u32 s{sT2}, s{b}, {c}')
        else:
            for tx,_ in d_next(sT2,False): a(tx)
        a(f's_cmp_eq_u32 s{sW}, {k+1}')
        if k==0:
            a(f's_mov_b32 s{sT0}, s{sT2}'); a(f's_mov_b32 s{sT1}, {(n%NRING)*SLOT}')
        else:
            a(f's_cselect_b32 s{sT0}, s{sT2}, s{sT0}'); a(f's_cselect_b32 s{sT1}, {(n%NRING)*SLOT}, s{sT1}')
    a(f's_sub_u32 s{sT0}, s{sT0}, s{sM5}')
def side_load(a, vm, side):
    for g in range(5):
        a(f's_add_u32 m0, s{sT1}, {g*4096}')
        for i in range(4):
            nt=' nt' if (OPT.get('wnt',0)==2 and 5<=side[1]<19) else ''
            vm.issue(f'buffer_load_dwordx4 v{vL16}, s[{S_WS}:{S_WS+3}], s{sT0} offen offset:{i*1024}{nt} lds',('ring',side[0]))
        if g<4: a(f's_add_u32 s{sT0}, s{sT0}, 4096')

def xbar(a, vm, halo=False, side=None):
    a.comment('==== xbar ====')
    vm.wait_all()
    a('s_waitcnt lgkmcnt(0)')
    a('s_barrier')
    a(f's_add_u32 s{sPH}, s{sPH}, 1')
    lj=L('XJ'); lsafe=L('XS'); lpoll=L('XP'); lst=L('XST')
    lside=L('XL')
    if side:
        for n in side:
            assert RING.next==n, (RING.next,n)
            RING.take(1)
        side_scalar(a,side)
    a(f's_cmp_lg_u32 s{sW}, 0'); a(f's_cbranch_scc1 {lside if side else lj}')
    v=vT
    a(f's_add_u32 s{sE1}, s{sN}, s{sPH}'); a(f's_add_u32 s{sE1}, s{sE1}, 0x20')
    a(f'v_mov_b32 v{v}, s{sE1}'); a(f's_lshl_b32 s{sE0}, s{sRHO}, 2'); a(f's_add_u32 s{sE0}, s{sE0}, s{sFLA}'); a(f'v_mov_b32 v{v+1}, 0')
    a(f's_cmp_eq_u32 s{sMODE}, 0'); a(f's_cbranch_scc0 {lsafe}')
    set_exec(a,1,0)
    a(f'buffer_store_dword v{v}, v{v+1}, s[{S_WS}:{S_WS+3}], s{sE0} offen')
    full_exec(a)
    a.label(lst)
    SAFE_BLOCKS.append((lsafe,lst))
    if halo:
        lh=L('XH')
        a(f's_cmp_eq_u32 s{sQ}, 3'); a(f's_cbranch_scc0 {lh}')
        a(f's_add_u32 s{sE0}, s{sN}, 2'); a(f'v_mov_b32 v{v+2}, s{sE0}')
        a(f's_lshl_b32 s{sE0}, s{sG}, 7'); a(f's_lshl_b32 s{sE2}, s{sC8}, 2'); a(f's_add_u32 s{sE0}, s{sE0}, s{sE2}'); a(f's_add_u32 s{sE0}, s{sE0}, {F_HF}')
        set_exec(a,1,0)
        a(f'buffer_store_dword v{v+2}, v{v+1}, s[{S_WS}:{S_WS+3}], s{sE0} offen sc1')
        full_exec(a)
        a.label(lh)
    a(f'v_and_b32 v{v+1}, 31, v{vLANE}'); a(f'v_lshlrev_b32 v{v+1}, 2, v{v+1}')
    a(f's_mov_b32 s{sSPIN}, 0')
    a.label(lpoll)
    a(f'buffer_load_dword v{v+2}, v{v+1}, s[{S_WS}:{S_WS+3}], s{sFLA} offen sc1')
    a(f's_add_u32 s{sSPIN}, s{sSPIN}, 1'); a(f's_cmp_gt_u32 s{sSPIN}, {SPIN_MAX}'); a('s_cbranch_scc1 L_END')
    a('s_waitcnt vmcnt(0)')
    a(f'v_subrev_u32 v{v+2}, s{sE1}, v{v+2}'); a(f'v_cmp_le_u32 s[{sPA}:{sPA+1}], 8, v{v+2}')
    a(f's_cmp_eq_u64 s[{sPA}:{sPA+1}], 0'); a(f's_cbranch_scc0 {lpoll}')
    if side:
        a(f's_branch {lj}')
        a.label(lside)
        side_load(a,vm,side)
    a.label(lj)
    a('s_barrier')
def emit_safe_blocks(a):
    v=vT
    for lsafe,lst in SAFE_BLOCKS:
        a.label(lsafe)
        a('buffer_wbl2 sc1'); a('s_waitcnt vmcnt(0)')
        set_exec(a,1,0)
        a(f'buffer_store_dword v{v}, v{v+1}, s[{S_WS}:{S_WS+3}], s{sE0} offen sc1')
        full_exec(a)
        a(f's_branch {lst}')

vXO=104; vHA=132
def xo_setup(a, vXO=104):
    v=vT
    a(f'v_lshrrev_b32 v{v}, 4, v{vLANE}'); a(f'v_and_b32 v{v+1}, 15, v{vLANE}')
    a(f'v_lshrrev_b32 v{v+2}, 1, v{v}'); a(f'v_lshlrev_b32 v{v+2}, 9, v{v+2}'); a(f'v_and_b32 v{v}, 1, v{v}'); a(f'v_lshlrev_b32 v{v}, 3, v{v}')
    a(f'v_lshlrev_b32 v{vXO}, 4, v{v+1}'); a(f'v_add_u32 v{vXO}, v{vXO}, v{v+2}'); a(f'v_add_u32 v{vXO}, v{vXO}, v{v}')
def ha_setup(a, dst, v):
    a(f'v_lshrrev_b32 v{v}, 5, v{vLANE}'); a(f'v_bfe_u32 v{v+1}, v{vLANE}, 4, 1'); a(f'v_mul_u32_u24 v{v+1}, {54*1024}, v{v+1}')
    a(f'v_lshlrev_b32 v{v}, 8, v{v}'); a(f'v_add_u32 v{v+1}, v{v+1}, v{v}')
    a(f'v_and_b32 v{v}, 15, v{vLANE}'); a(f'v_lshlrev_b32 v{v}, 4, v{v}'); a(f'v_add_u32 v{dst}, v{v+1}, v{v}')

def tload(vaddr, soff, off=0, dst=vDUM):
    return f'buffer_load_dword v{dst}, v{vaddr}, s[{S_WS}:{S_WS+3}], s{soff} offen offset:{off}'
def touch_table(a):
    o=40; t=vT
    oob=t+7
    a(f'v_mov_b32 v{oob}, {OOB:#x}')
    a(f'v_lshrrev_b32 v{t}, 3, v{vLANE}'); a(f'v_mul_u32_u24 v{t}, 20480, v{t}'); a(f'v_and_b32 v{t+1}, 7, v{vLANE}'); a(f'v_lshlrev_b32 v{t+1}, 7, v{t+1}')
    a(f'v_add_u32 v{t}, v{t}, v{t+1}'); a(f'v_add_u32 v{t}, s{rO_st}, v{t}')
    a(f'v_bfe_u32 v{t+1}, v{vLANE}, 1, 1'); a(f'v_mul_u32_u24 v{t+1}, 20480, v{t+1}'); a(f'v_and_b32 v{t+2}, 1, v{vLANE}'); a(f'v_lshlrev_b32 v{t+2}, 7, v{t+2}')
    a(f'v_add_u32 v{t+1}, v{t+1}, v{t+2}'); a(f'v_add_u32 v{t+1}, s{rO_tl}, v{t+1}')
    a(f'v_cmp_gt_u32 vcc, 16, v{vLANE}'); a(f'v_cndmask_b32 v{o}, v{t+1}, v{t}, vcc')
    a(f'v_cmp_gt_u32 vcc, 20, v{vLANE}'); a(f'v_cndmask_b32 v{o}, v{oob}, v{o}, vcc')
    a(f'v_lshrrev_b32 v{t}, 2, v{vLANE}'); a(f'v_lshlrev_b32 v{t}, 10, v{t}'); a(f'v_bfe_u32 v{t+1}, v{vLANE}, 1, 1'); a(f'v_lshlrev_b32 v{t+1}, 9, v{t+1}')
    a(f'v_add_u32 v{t}, v{t}, v{t+1}'); a(f'v_and_b32 v{t+1}, 1, v{vLANE}'); a(f'v_lshlrev_b32 v{t+1}, 7, v{t+1}'); a(f'v_add_u32 v{t}, v{t}, v{t+1}')
    a(f'v_add_u32 v{t}, s{rXT_st}, v{t}')
    for d,(rx,rs) in ((1,(R_XT2,R_ST2)),(3,(R_XT1,R_ST1))):
        a(f'v_add_u32 v{t+1}, {rx}, v{t}'); a(f's_add_u32 s{sT0}, s{rST_st}, {rs}'); a(f'v_mov_b32 v{t+2}, s{sT0}')
        a(f'v_cmp_gt_u32 vcc, 20, v{vLANE}'); a(f'v_cndmask_b32 v{o+d}, v{t+2}, v{t+1}, vcc')
        a(f'v_cmp_gt_u32 vcc, 21, v{vLANE}'); a(f'v_cndmask_b32 v{o+d}, v{oob}, v{o+d}, vcc')
    a(f'v_lshrrev_b32 v{t}, 3, v{vLANE}'); a(f'v_add_u32 v{t}, s{sU0}, v{t}'); a(f'v_lshrrev_b32 v{t+1}, 1, v{t}'); a(f'v_lshlrev_b32 v{t+1}, 10, v{t+1}')
    a(f'v_and_b32 v{t}, 1, v{t}'); a(f'v_lshlrev_b32 v{t}, 9, v{t}'); a(f'v_add_u32 v{t}, v{t}, v{t+1}')
    a(f'v_bfe_u32 v{t+1}, v{vLANE}, 2, 1'); a(f'v_mul_u32_u24 v{t+1}, {54*KB}, v{t+1}'); a(f'v_add_u32 v{t}, v{t}, v{t+1}')
    a(f'v_and_b32 v{t+1}, 3, v{vLANE}'); a(f'v_lshlrev_b32 v{t+1}, 7, v{t+1}'); a(f'v_add_u32 v{t}, v{t}, v{t+1}'); a(f'v_add_u32 v{t}, s{rH_st}, v{t}')
    a(f'v_cmp_gt_u32 vcc, 56, v{vLANE}'); a(f'v_cndmask_b32 v{o+2}, v{oob}, v{t}, vcc')
    a(f's_lshl_b32 s{sT0}, s{sW}, 10'); a(f's_add_u32 s{sT0}, s{sT0}, {L_TCH}'); a(f'v_add_u32 v{t}, s{sT0}, v{vL16}')
    a(f'ds_write_b128 v{t}, v[{o}:{o+3}]')
    return o
def touch_read_list(dst, tmpv):
    return [f's_lshl_b32 s{sT5}, s{sW}, 10', f's_add_u32 s{sT5}, s{sT5}, {L_TCH}', f'v_add_u32 v{tmpv}, s{sT5}, v{vL16}', f'ds_read_b128 v[{dst}:{dst+3}], v{tmpv}']
def tl(vaddr, dst=vDUM): return f'buffer_load_dword v{dst}, v{vaddr}, s[{S_WS}:{S_WS+3}], s{sGB} offen'

vACC2=40; vWF=64
def gemm80(a, vm, T, n0, breg, btag, limit, extra=None, pre=None, maxissue=1, stampslots=False):
    NF=T*5; D=10
    F=Fill(a,vm)
    for x in (pre or []): F.q.append(x)
    def slot(f): return n0+(f//5)//4
    def rd(f):
        t,b=divmod(f,5); n=slot(f)
        addr=(n%NRING)*SLOT+((t%4)*5+b)*1024
        br,off=lds_base(addr)
        return f'ds_read_b128 v[{vWF+4*(f%D)}:{vWF+4*(f%D)+3}], v{br} offset:{off}'
    released=set()
    def beta(n,f_issued):
        assert not F.has(('ring',n)), ('ring slot not issued yet',n)
        assert RING.occ[n%NRING]==n
        vm.wait(('ring',n)); a('s_barrier')
        for m in range(n0,n):
            if m not in released and (m-n0+1)*20-1 < f_issued: RING.release(m); released.add(m)
        for m in RING.take(maxissue,limit): F.addl(ring_issue(m),('ring',m))
        if stampslots: stamp(a,f'b{n}')
    beta(n0,0)
    nread=0
    for f in range(min(D,NF)): a(rd(f)); nread+=1
    for f in range(NF):
        t,b=divmod(f,5)
        if b==0:
            if extra and t in extra:
                for x in extra[t]: F.q.append(x)
            assert not F.has(btag(t)), ('B frag not issued',t)
            vm.wait(btag(t))
        later=nread-1-f
        if b in (0,2,4) or later<2:
            need=f if (b==4 or later<2) else f+1
            a(f's_waitcnt lgkmcnt({max(0,nread-1-need)})')
        acc=vACC2+4*b
        c='0' if t==0 else f'v[{acc}:{acc+3}]'
        a(f'v_mfma_f32_16x16x32_bf16 v[{acc}:{acc+3}], v[{vWF+4*(f%D)}:{vWF+4*(f%D)+3}], {breg(t)}, {c}')
        if nread<NF:
            if nread%20==0: beta(slot(nread),f+1)
            a(rd(nread)); nread+=1
        F.emit(1)
        if F.q and F.q[0][0].startswith('s_') and F.q[0][1] is None: F.emit(1)
    F.flush()
    for m in range(n0,n0+(T+3)//4):
        if m not in released: RING.release(m)

def res_update(a):
    t=vT
    for b in range(5):
        for h in range(2):
            r=vRES+2*b+h; p=vACC2+4*b+2*h; tt=t+2*((2*b+h)%4)
            a(f'v_lshlrev_b32 v{tt}, 16, v{r}'); a(f'v_and_b32 v{tt+1}, 0xffff0000, v{r}')
            a(f'v_pk_add_f32 v[{p}:{p+1}], v[{p}:{p+1}], v[{tt}:{tt+1}]')
    for b in range(5):
        for h in range(2):
            r=vRES+2*b+h; p=vACC2+4*b+2*h
            a(f'v_cvt_pk_bf16_f32 v{r}, v{p}, v{p+1}')

def xt_store(a, vm, sXTabs, sSTabs):
    for b in range(4):
        vm.issue(f'buffer_store_dwordx2 v[{vRES+2*b}:{vRES+2*b+1}], v{vXO}, s[{S_WS}:{S_WS+3}], s{sXTabs} offen offset:{b*1024}','xst')
    a(f's_add_u32 s{sE3}, s{sXTabs}, 4096')
    vm.issue(f'buffer_store_dwordx2 v[{vRES+8}:{vRES+9}], v{vXO}, s[{S_WS}:{S_WS+3}], s{sE3} offen','xst')
    t=vT+8
    startup.stats_from_res(a,t)
    a(f'v_and_b32 v{vT}, 15, v{vLANE}'); a(f'v_lshlrev_b32 v{vT}, 3, v{vT}')
    set_exec(a,0xffff,0)
    vm.issue(f'buffer_store_dwordx2 v[{t}:{t+1}], v{vT}, s[{S_WS}:{S_WS+3}], s{sSTabs} offen','xst')
    full_exec(a)

def p2(a, vm):
    a.comment('==== P2 ====')
    a(f's_add_u32 s{sE0}, s{sLB}, s{rO_ld}')
    for t in range(20):
        if t%4==0 and t>0: a(f's_add_u32 s{sE0}, s{sE0}, 4096')
        vm.issue(f'buffer_load_dwordx4 a[{160+4*t}:{163+4*t}], v{vL16}, s[{S_WS}:{S_WS+3}], s{sE0} offen offset:{(t%4)*1024}{SCL()}',('o',t))
    xo_setup(a)
    pre=[]
    for n in RING.take(1,6):
        pre+=[(tx,('ring',n) if isv else None,1) for tx,isv in ring_issue(n)]
    gemm80(a,vm,20,0,lambda t:f'a[{160+4*t}:{163+4*t}]',lambda t:('o',t),8,pre=pre)
    a(f's_add_u32 s{sE0}, s{sLB}, s{rXT_st}'); a(f's_add_u32 s{sE0}, s{sE0}, {R_XT2}')
    a(f's_add_u32 s{sE1}, s{sLB}, s{rST_st}'); a(f's_add_u32 s{sE1}, s{sE1}, {R_ST2}')
    res_update(a)
    xt_store(a,vm,sE0,sE1)

vXS=192; vA3=[40,56,72]; vW3=88; D3=5; vMF=112; vK1R=116; vK2R=117; vCC=118; vG=120; vHO=128; vCSA=133; vST3=144
def xop(s): return f'a[{160+4*s}:{163+4*s}]' if s<24 else f'v[{vXS+4*(s-24)}:{vXS+4*(s-24)+3}]'
def p3_epi(A):
    ch=[]
    for i in range(8):
        g=A+i; u=A+8+i; t=vG+i
        ch.append([(f'v_mul_f32 v{t}, v{g}, v{g}',1),(f'v_fma_f32 v{t}, v{t}, v{vK2R}, v{vK1R}',1),(f'v_mul_f32 v{t}, v{t}, v{g}',1),
                   (f'v_exp_f32 v{t}, v{t}',2),(f'v_mul_f32 v{u}, v{u}, v{g}',1),(f'v_fma_f32 v{t}, v{t}, v{vCC}, v{vCC}',1),
                   (f'v_rcp_f32 v{t}, v{t}',2),(f'v_mul_f32 v{u}, v{u}, v{t}',1)])
    res=[]
    for j in range(8):
        for i in range(8): res.append(ch[i][j])
    for k in range(4): res.append((f'v_cvt_pk_bf16_f32 v{vHO+k}, v{A+8+2*k}, v{A+8+2*k+1}',1))
    return res
sHst=sE2
def p3(a, vm, limit):
    a.comment('==== P3 ====')
    F=Fill(a,vm); F._cap0=lambda cap: 4
    a(f's_mul_i32 s{sDJ}, s{sROT}, {SLOT}'); a(f's_add_u32 s{sDJ}, s{sDJ}, s{sDS}')
    a(f's_add_u32 s{sE3}, s{sLB}, s{rX3_ld}'); a(f's_add_u32 s{sE3}, s{sE3}, {R_XT2}')
    NPRE=OPT.get('p3pre',8)
    xl=[]
    for s in range(40):
        if s%4==0 and s>0: xl.append((f's_add_u32 s{sE3}, s{sE3}, 4096',None))
        xl.append((f'buffer_load_dwordx4 {xop(s)}, v{vL16}, s[{S_WS}:{S_WS+3}], s{sE3} offen offset:{(s%4)*1024}{SCL()}',('x3',s)))
    k=0
    while True:
        tx,tag=xl.pop(0)
        if tag is None: a(tx)
        else:
            vm.issue(tx,tag)
            if tag[1]==3:
                a(f'v_and_b32 v{vT}, 31, v{vLANE}'); a(f'v_lshlrev_b32 v{vT}, 3, v{vT}')
                a(f's_add_u32 s{sE1}, s{sLB}, s{rST3_ld}'); a(f's_add_u32 s{sE1}, s{sE1}, {R_ST2}')
                for c in range(8):
                    vm.issue(f'buffer_load_dwordx2 v[{vST3+2*c}:{vST3+2*c+1}], v{vT}, s[{S_WS}:{S_WS+3}], s{sE1} offen offset:{(c%2)*2048}{SCL()}','st3')
                    if c%2==1 and c<7: a(f's_add_u32 s{sE1}, s{sE1}, 4096')
            if tag[1]==NPRE-1: break
    ha_setup(a,vHA,vT+2)
    a(f's_add_u32 s{sHst}, s{sLB}, s{rH_st}')
    a(f's_add_u32 s{sT4}, s{sLBT}, s{rH_st}')
    seq=[]
    for s in range(41): seq+=[(0,s),(1,s)]
    for u in range(2,7): seq+=[(u,s) for s in range(41)]
    NR=D3+1
    def slot_of(i):
        u,s=seq[i]; return None if s==40 else 5+2*u+s//20
    done_beta=set(); lastread={}
    for i in range(len(seq)):
        n=slot_of(i)
        if n is not None: lastread[n]=i
    released=set(); cur=[0]
    def beta(n):
        done_beta.add(n)
        grp=[n]
        if OPT.get('bar1',1) and (n-5)%2==0 and n>=9 and RING.occ[(n+1)%NRING]==n+1 and not F.has(('ring',n+1)):
            grp.append(n+1); done_beta.add(n+1)
        if n in (5,):
            grp.append(7); done_beta.add(7)
        if n==6: grp.append(8); done_beta.add(8)
        for m in grp:
            assert not F.has(('ring',m)), ('ring slot not issued yet',m)
            assert RING.occ[m%NRING]==m
        if not OPT.get('x_nowait3'): vm.wait(*[('ring',m) for m in grp])
        if not OPT.get('x_nobar3'): a('s_barrier')
        release_take()
    def release_take():
        for m in sorted(lastread):
            if m not in released and lastread[m]<cur[0]: RING.release(m); released.add(m)
        if not xl:
            for m in RING.take(3,limit):
                if not OPT.get('x_noring3'): F.addl(ring_issue(m),('ring',m),hi=True)
    rot=OPT.get('rot3',0)
    def emit_read(i):
        n=slot_of(i)
        if n is not None and n not in done_beta: beta(n)
        u,s=seq[i]; r=vW3+4*(i%NR)
        if s==40:
            d=(vprime(u,1)-u) if rot else 0
            if d:
                a(f's_mul_i32 s{sT5}, s{sR}, {d*1024}'); a(f's_add_i32 s{sT5}, s{sT5}, {L_CSF+u*1024}')
                a(f'v_add_u32 v{vCSA}, s{sT5}, v{vL16}'); a(f'ds_read_b128 v[{r}:{r+3}], v{vCSA}')
            else:
                br,off=lds_base(L_CSF+u*1024); a(f'ds_read_b128 v[{r}:{r+3}], v{br} offset:{off}')
        else:
            addr=(n%NRING)*SLOT+(s%20)*1024; br,off=lds_base(addr)
            a(f'ds_read_b128 v[{r}:{r+3}], v{br} offset:{off}')
    nread=0
    for i in range(D3): emit_read(i); nread+=1
    pend=[]; epi_end={}; stats_done=[False]
    for i,(u,s) in enumerate(seq):
        if u==0 and s<40:
            while xl:
                tx,tag=xl.pop(0)
                if tag is None: a(tx)
                else:
                    vm.issue(tx,tag); break
        if u<2 and s<40: vm.wait(('x3',s))
        if u==0 and s==8:
            F.flush()
            vm.wait('st3'); d=vST3
            for c in (1,2,3): a(f'v_add_f32 v{d}, v{d}, v{d+2*c}'); a(f'v_add_f32 v{d+1}, v{d+1}, v{d+2*c+1}')
            for c in (5,6,7): a(f'v_add_f32 v{d+8}, v{d+8}, v{d+2*c}'); a(f'v_add_f32 v{d+9}, v{d+9}, v{d+2*c+1}')
            for tx in [f'v_add_f32 v{d}, v{d}, v{d+8}', f'v_add_f32 v{d+1}, v{d+1}, v{d+9}']+ln_finalize_list(d,d+1,d+2): F.add(tx)
            K1=-2*0.7978845608028654*1.4426950408889634; K2=K1*0.044715
            for tx in [f'v_mul_f32 v{vK1R}, {f2u(K1):#x}, v{d+1}', f'v_mul_f32 v{d+2}, v{d+1}, v{d+1}', f'v_mul_f32 v{vK2R}, v{d+2}, v{d+1}',
                       f'v_mul_f32 v{vK2R}, {f2u(K2):#x}, v{vK2R}', f'v_rcp_f32 v{vCC}, v{d+2}',
                       f'v_lshrrev_b32 v{d+3}, 16, v{d}', f'v_and_b32 v{d+4}, 0xffff0000, v{d}', f'v_or_b32 v{d+4}, v{d+4}, v{d+3}',
                       f'v_cmp_gt_u32 vcc, 32, v{vLANE}', f'v_mov_b32 v{vMF+2}, 0', f'v_mov_b32 v{vMF+3}, 0',
                       f'v_cndmask_b32 v{vMF}, 0, v{d+4}, vcc', f'v_cndmask_b32 v{vMF+1}, 0, v{d+3}, vcc']: F.add(tx)
            F.add((lambda: stats_done.__setitem__(0,True)),None,0)
        if s==0 and u>=3: assert epi_end.get(u-3,False), ('epi not finished',u)
        if s==40: assert stats_done[0]
        tp=None
        if tp is not None and OPT.get('touch',1):
            F.add(f's_add_u32 s{sT5}, s{sHR+tp}, s{sT4}'); F.add(tload(vHA,sT5,0,140),'touch')
        if OPT.get('stamp3') and ((s==0 and u!=1) or (u==0 and s in (10,20,30))): stamp(a,f'u{u}s{s}')
        A=vA3[u%3]
        a(f's_waitcnt lgkmcnt({min(15,nread-1-i)})')
        r=vW3+4*(i%NR)
        b = xop(s) if s<40 else f'v[{vMF}:{vMF+3}]'
        c='0' if s==0 else f'v[{A}:{A+15}]'
        a(f'v_mfma_f32_32x32x16_bf16 v[{A}:{A+15}], v[{r}:{r+3}], {b}, {c}')
        cur[0]=i+1
        if nread<len(seq): emit_read(nread); nread+=1
        if i in (66,84):
            a('s_barrier'); release_take()
        if s==40: pend.append((u,i))
        if pend and i-pend[0][1]>=1:
            uu,_=pend.pop(0)
            if not OPT.get('x_noepi3'):
                for tx,w in p3_epi(vA3[uu%3]): F.add(tx,None,w)
            F.add(f's_add_u32 s{sE1}, s{sHR+uu}, s{sHst}')
            F.add(f'buffer_store_dwordx4 v[{vHO}:{vHO+3}], v{vHA}, s[{S_WS}:{S_WS+3}], s{sE1} offen','hst')
            F.add((lambda uu=uu: epi_end.__setitem__(uu,True)),None,0)
        F.emit(4)
    while pend:
        uu,_=pend.pop(0)
        for tx,w in p3_epi(vA3[uu%3]): F.add(tx,None,w)
        F.add(f's_add_u32 s{sE1}, s{sHR+uu}, s{sHst}')
        F.add(f'buffer_store_dwordx4 v[{vHO}:{vHO+3}], v{vHA}, s[{S_WS}:{S_WS+3}], s{sE1} offen','hst')
    F.flush()
    for m in sorted(lastread):
        if m not in released: RING.release(m)

def cs_build_issue(a, vm, F=None):
    v=vT
    a(f'v_lshrrev_b32 v{v}, 5, v{vLANE}'); a(f's_lshl_b32 s{sE0}, s{sW}, 1'); a(f'v_add_u32 v{v}, s{sE0}, v{v}')
    a(f'v_add_u32 v{v+1}, s{sU0}, v{v}'); a(f'v_mul_u32_u24 v{v+1}, {20*128}, v{v+1}')
    a(f'v_and_b32 v{v+2}, 31, v{vLANE}'); a(f'v_lshlrev_b32 v{v+2}, 2, v{v+2}'); a(f'v_add_u32 v{v+1}, v{v+1}, v{v+2}')
    a(f's_cmp_lt_u32 s{sC16}, 12'); a(f's_cselect_b32 s{sE0}, 7, 6')
    a(f'v_mov_b32 v{v+2}, {OOB:#x}'); a(f'v_cmp_gt_u32 vcc, s{sE0}, v{v}'); a(f'v_cndmask_b32 v{v+5}, v{v+2}, v{v+1}, vcc')
    F.add(f's_mov_b32 s{sE0}, {CSP}')
    for sp in range(20):
        F.add(f'buffer_load_dword v{196+sp}, v{v+5}, s[{S_WS}:{S_WS+3}], s{sE0} offen offset:{sp*128}','csp')
def cs_build_finish(a, vm):
    vm.wait('csp')
    for sp in range(1,20): a(f'v_add_f32 v196, v196, v{196+sp}')
    a('v_cvt_pk_bf16_f32 v197, v196, v196'); a('v_and_b32 v198, 0xffff0000, v197'); a('v_sub_f32 v199, v196, v198')
    a('v_cvt_pk_bf16_f32 v200, v199, v199'); a('v_and_b32 v201, 0xffff0000, v200'); a('v_sub_f32 v202, v199, v201')
    a('v_cvt_pk_bf16_f32 v203, v202, v202')
    a('v_lshrrev_b32 v204, 16, v198'); a('v_or_b32 v204, v204, v201'); a('v_and_b32 v205, 0xffff, v203')
    a('v_mov_b32 v206, 0'); a('v_mov_b32 v207, 0')
    for k in range(4): a(f'v_mov_b32 v{208+k}, 0')
    v=vT
    a(f'v_lshrrev_b32 v{v}, 5, v{vLANE}'); a(f'v_lshlrev_b32 v{v}, 10, v{v}'); a(f'v_and_b32 v{v+1}, 31, v{vLANE}'); a(f'v_lshlrev_b32 v{v+1}, 4, v{v+1}')
    a(f'v_add_u32 v{v}, v{v}, v{v+1}'); a(f's_lshl_b32 s{sE0}, s{sW}, 11'); a(f's_add_u32 s{sE0}, s{sE0}, {L_CSF}'); a(f'v_add_u32 v{v}, s{sE0}, v{v}')
    a(f'ds_write_b128 v{v}, v[204:207]'); a(f'ds_write_b128 v{v}, v[208:211] offset:512')

def p4(a, vm):
    a.comment('==== P4 ====')
    a(f's_add_u32 s{sE2}, s{sLB}, s{rH_ld}')
    if OPT.get('x_noH'): a(f's_mov_b32 s{sOOB}, {OOB:#x}')
    a(f's_add_u32 s{sHEND}, s{sE2}, {14*4096}'); a(f's_add_u32 s{sH13}, s{sE2}, {13*4096}')
    a(f's_lshl_b32 s{sHJ}, s{sROT}, 12'); a(f's_add_u32 s{sHJ}, s{sHJ}, s{sE2}')
    def hslot(j):
        o=[(f's_cmp_eq_u32 s{sHJ}, s{sH13}',None,1),(f's_cselect_b32 s{sH2}, {OOB:#x}, s{sHJ}',None,1)]
        for tt in range(4):
            t=4*j+tt; base=sHJ if tt<2 else sH2
            if OPT.get('x_noH'): base=sOOB
            o.append((f'buffer_load_dwordx4 a[{160+4*(t%24)}:{163+4*(t%24)}], v{vL16}, s[{S_WS}:{S_WS+3}], s{base} offen offset:{tt*1024}{SCL()}',('h',t),1))
        o+=[(f's_add_u32 s{sHJ}, s{sHJ}, 4096',None,1),(f's_cmp_eq_u32 s{sHJ}, s{sHEND}',None,1),(f's_cselect_b32 s{sHJ}, s{sE2}, s{sHJ}',None,1)]
        return o
    NPRE=2
    for j in range(NPRE):
        for tx,tag,w in hslot(j):
            if tag is None: a(tx)
            else: vm.issue(tx,tag)
    xo_setup(a)
    extra={}
    for k,j in enumerate(range(NPRE,6)): extra.setdefault(k,[]).extend(hslot(j))
    for j in range(6,14): extra.setdefault(4*(j-6)+4,[]).extend(hslot(j))
    if OPT.get('touch',1):
        extra.setdefault(12,[]).extend([(tx,None,1) for tx in touch_read_list(108,112)])
        extra.setdefault(15,[]).extend([('s_waitcnt lgkmcnt(0)',None,1),(tl(111),'touch',1),(tl(108),'touch',1)])
    gemm80(a,vm,56,19,lambda t:f'a[{160+4*(t%24)}:{163+4*(t%24)}]',lambda t:('h',t),32,extra=extra,stampslots=OPT.get('stampslots'))

def out_store(a, vm):
    v=vT
    a(f'v_and_b32 v{v}, 15, v{vLANE}'); a(f'v_lshrrev_b32 v{v+1}, 4, v{vLANE}')
    a(f'v_mul_u32_u24 v{v}, 1280, v{v}'); a(f'v_lshlrev_b32 v{v+1}, 3, v{v+1}'); a(f'v_add_u32 v{v}, v{v}, v{v+1}')
    a(f's_lshl_b32 s{sE0}, s{sG}, 8'); a(f's_lshl_b32 s{sE1}, s{sQ}, 6'); a(f's_add_u32 s{sE0}, s{sE0}, s{sE1}')
    a(f's_lshl_b32 s{sE1}, s{sW}, 4'); a(f's_add_u32 s{sE0}, s{sE0}, s{sE1}'); a(f's_mul_i32 s{sE0}, s{sE0}, 1280')
    a(f's_mul_i32 s{sE1}, s{sC8}, 160'); a(f's_add_u32 s{sE0}, s{sE0}, s{sE1}')
    for b in range(5):
        a(f'buffer_store_dwordx2 v[{vRES+2*b}:{vRES+2*b+1}], v{v}, s[{S_OUT}:{S_OUT+3}], s{sE0} offen offset:{32*b}')

def p4_finish(a, vm):
    res_update(a)
    lout=L('FO'); lnh=L('FN')
    a(f's_cmp_eq_u32 s{sLAYER}, 1'); a(f's_cbranch_scc1 {lout}')
    a(f's_mul_i32 s{sE0}, s{sMODE}, {SAFEOFF}'); a(f's_add_u32 s{sE0}, s{sE0}, s{sGB}')
    a(f's_add_u32 s{sE1}, s{sE0}, s{rST_st}'); a(f's_add_u32 s{sE1}, s{sE1}, {R_ST1}')
    a(f's_add_u32 s{sE0}, s{sE0}, s{rXT_st}'); a(f's_add_u32 s{sE0}, s{sE0}, {R_XT1}')
    xt_store(a,vm,sE0,sE1)
    t=vT+8
    a(f's_lshl_b32 s{sE0}, s{sQ}, 2'); a(f's_add_u32 s{sE0}, s{sE0}, s{sW}'); a(f's_cmp_eq_u32 s{sE0}, 15')
    a(f's_cbranch_scc0 {lnh}')
    q0=list(vm.q)
    a(f's_mul_i32 s{sE0}, s{sC8}, {5*512}'); a(f's_add_u32 s{sE0}, s{sE0}, s{sGB}'); a(f's_add_u32 s{sE0}, s{sE0}, {G_HX}')
    v=vT+2
    a(f'v_lshrrev_b32 v{v}, 4, v{vLANE}'); a(f'v_and_b32 v{v+1}, 15, v{vLANE}'); a(f'v_lshrrev_b32 v{v+2}, 1, v{v}'); a(f'v_lshlrev_b32 v{v+2}, 8, v{v+2}')
    a(f'v_and_b32 v{v}, 1, v{v}'); a(f'v_lshlrev_b32 v{v}, 3, v{v}'); a(f'v_lshlrev_b32 v{v+1}, 4, v{v+1}'); a(f'v_add_u32 v{v}, v{v}, v{v+1}'); a(f'v_add_u32 v{v}, v{v}, v{v+2}')
    for b in range(5):
        a(f'buffer_store_dwordx2 v[{vRES+2*b}:{vRES+2*b+1}], v{v}, s[{S_WS}:{S_WS+3}], s{sE0} offen offset:{b*512} sc1')
    a(f's_lshl_b32 s{sE0}, s{sC8}, 7'); a(f's_add_u32 s{sE0}, s{sE0}, s{sGB}'); a(f's_add_u32 s{sE0}, s{sE0}, {G_HST}')
    set_exec(a,0xffff,0)
    a(f'buffer_store_dwordx2 v[{t}:{t+1}], v{vT}, s[{S_WS}:{S_WS+3}], s{sE0} offen sc1')
    full_exec(a)
    a.label(lnh)
    return lout
```

```python
import struct
import layout as _ly
S_WS=4; S_X=8; S_OUT=12; S_DBG=16; S_A=20; S_B=24
sG=28; sRHO=29; sW=30; sR=31; sC16=32; sQ=33; sC8=34; sLAYER=35; sMODE=36; sGB=37; sXCC=38; sPH=39
sGU=40; sHR=47; sLB=54; sLBT=55
sM5=60; sWoS=61; sDS=62; sD13=63; sU0=64; sFLA=65
rO_st=66; rO_tl=67; rO_ld=68; rXT_st=69; rST_st=70; rX3_ld=71; rST3_ld=72; rH_st=73; rH_ld=74
sE0=75; sE1=76; sE2=77; sE3=78
sXS=79; sM0B=80; sWQ=81; sHS=82; sSPIN=83; sPA=84; sN=86
sDJ=92; sDEND=93; sD13R=94; sROT=95; sHJ=96; sHEND=97; sH13=98; sH2=99
sT0=20; sT1=21; sT2=22; sT3=23; sT4=24; sT5=25
vLANE=0; vL16=1; vRES=2; vCSQ=12; vSTG0=20; vSTG1=21; vL16b=22; vL16c=23
vT=24
vDUM=255
OPT=dict()
SPIN_MAX=2000000
def SCL(): return ' sc1' if OPT.get('scl',1) else ''
def WNT(): return ' nt' if OPT.get('wnt',0) else ''
def f2u(x): return struct.unpack('<I',struct.pack('<f',x))[0]
_lbl=[0]
def L(p='L'):
    _lbl[0]+=1; return f'{p}_{_lbl[0]}'
def set_exec(a, lo, hi):
    a(f's_mov_b32 exec_lo, {lo:#x}'); a(f's_mov_b32 exec_hi, {hi:#x}')
def full_exec(a): a('s_mov_b64 exec, -1')
STAMPBASE=_ly.WS_USED
_st=[0]; STAMP_NAMES=[]
def stamp(a, name, real=False):
    if not OPT.get('stamp'): return
    i=_st[0]; _st[0]+=1; STAMP_NAMES.append(name)
    lk=L('ST')
    a(f's_cmp_lg_u32 s{sW}, 0'); a(f's_cbranch_scc1 {lk}')
    a('s_memrealtime s[84:85]' if real else 's_memtime s[84:85]'); a('s_waitcnt lgkmcnt(0)')
    a('v_mov_b32 v38, s84'); a('s_lshl_b32 s3, s2, 9'); a(f's_add_u32 s3, s3, {STAMPBASE+4*i}')
    if OPT.get('_inlayer'):
        a(f's_lshl_b32 s85, s{sLAYER}, 8'); a('s_add_u32 s3, s3, s85')
    a('v_mov_b32 v39, 0')
    set_exec(a,1,0)
    a(f'buffer_store_dword v38, v39, s[{S_WS}:{S_WS+3}], s3 offen')
    full_exec(a)
    a.label(lk)
class Fill:
    def __init__(self,a,vm): self.a=a; self.vm=vm; self.q=[]; self.nhi=0
    def add(self,text,tag=None,w=1): self.q.append((text,tag,w))
    def addl(self,lst,tag=None,hi=False):
        items=[(t,tag if isv else None,1) for t,isv in lst]
        if hi:
            self.q[self.nhi:self.nhi]=items; self.nhi+=len(items)
        else: self.q.extend(items)
    def has(self,tag): return any(x[1]==tag for x in self.q)
    def emit(self,cap):
        while self.q and cap>0:
            t,tag,w=self.q[0]
            if w==0:
                self.q.pop(0); self.nhi=max(0,self.nhi-1)
                if callable(t): t()
                continue
            if w>cap and cap<self._cap0(cap): break
            self.q.pop(0); cap-=w; self.nhi=max(0,self.nhi-1)
            if tag is None: self.a(t)
            else: self.vm.issue(t,tag)
        while self.q and self.q[0][2]==0:
            t,tag,w=self.q.pop(0)
            if callable(t): t()
    def _cap0(self,cap): return 2
    def flush(self):
        self.nhi=0
        while self.q:
            t,tag,w=self.q.pop(0)
            if w==0:
                if callable(t): t()
                continue
            if tag is None: self.a(t)
            else: self.vm.issue(t,tag)
```

```python
from asmlib import *
from layout import *
from regs import *

def srd(a, dst, ptr, size):
    a(f's_mov_b32 s{dst}, s{ptr}'); a(f's_and_b32 s{dst+1}, s{ptr+1}, 0xffff')
    a(f's_mov_b32 s{dst+2}, {size:#x}'); a(f's_mov_b32 s{dst+3}, 0x20000')

def tables():
    RT=[]
    def ent(deltas,P,M,d,A,lim,Cmul,rowmul,size): RT.append([x*P for x in deltas]+[P,M,d,A,lim,Cmul,rowmul,size])
    ent([4*i for i in range(8)],3840,52,5,1280,15,80,32*3840,640*3840)
    ent([8*(i>>2)+4*(i&1) for i in range(8)],3456,32,8,16*3456,16,128,32*3456,640*3456)
    ent([16*(i>>2)+4*((i>>1)&1)+8*(i&1) for i in range(8)],1280,16,16,0,16,256,32*1280,1728*1280)
    ent([20*(i&1)+4*(i>>1) for i in range(8)],1280,16,16,0,16,256,40*1280,640*1280)
    ent([40*(i>>1)+16+20*(i&1) for i in range(8)],1280,16,16,0,16,256,160*1280,640*1280)
    DT=[[f*20*KB for f in range(8)], [((f&3)*40+(f>>2))*KB for f in range(8)]]
    for stride in (54*5*KB,20*5*KB):
        for G in range(5):
            DT.append([((8*G+f)//5)*stride+((8*G+f)%5)*KB for f in range(8)])
    return RT,DT
RT_OFF=0; DT_OFF=5*64
def table_text():
    RT,DT=tables()
    o='.section .rodata,"a"\n.p2align 6\n.type relayout_tab,@object\nrelayout_tab:\n'
    for e in RT+DT: o+='.long '+', '.join(str(x) for x in e)+'\n'
    o+='.size relayout_tab, %d\n'%(5*64+12*32)
    return o

sTAB=2+98
def decode_pre(a, sTask, t):
    Tp,hi,lo,ty,rv,dv=t,t+1,t+2,t+3,t+4,t+5
    a(f's_mov_b32 s{ty}, 0'); a(f's_mov_b32 s{Tp}, s{sTask}')
    for k,st in enumerate((320,860,1130,1230)):
        a(f's_cmp_ge_u32 s{sTask}, {st}'); a(f's_cselect_b32 s{ty}, {k+1}, s{ty}')
        a(f's_sub_u32 s{lo}, s{sTask}, {st}'); a(f's_cselect_b32 s{Tp}, s{lo}, s{Tp}') if False else None
    for k,st in enumerate((320,860,1130,1230)):
        a(f's_sub_u32 s{lo}, s{sTask}, {st}'); a(f's_cmp_ge_u32 s{sTask}, {st}'); a(f's_cselect_b32 s{Tp}, s{lo}, s{Tp}')
    a(f's_cmp_lt_u32 s{ty}, 2'); a(f's_cselect_b32 s{hi}, 3277, 0'); a(f's_cselect_b32 s{lo}, 20, 5')
    a(f's_cmp_ge_u32 s{ty}, 2'); a(f's_cselect_b32 s{hi}, 13108, s{hi}')
    a(f's_mul_i32 s{hi}, s{hi}, s{Tp}'); a(f's_lshr_b32 s{hi}, s{hi}, 16')
    a(f's_mul_i32 s{lo}, s{lo}, s{hi}'); a(f's_sub_u32 s{lo}, s{Tp}, s{lo}')
    assert all((n*3277)>>16==n//20 for n in range(540)) and all((n*13108)>>16==n//5 for n in range(270))
    a(f's_min_u32 s{rv}, s{ty}, 3')
    a(f's_cmp_eq_u32 s{ty}, 3'); a(f's_cselect_b32 s{dv}, s{hi}, 0'); a(f's_cmp_ge_u32 s{dv}, 16'); a(f's_cselect_b32 s{rv}, 4, s{rv}')
    a(f's_lshl_b32 s{rv}, s{rv}, 6')
    a(f's_add_u32 s{dv}, s{lo}, 2'); a(f's_cmp_eq_u32 s{ty}, 3'); a(f's_cselect_b32 s{t+6}, 5, 0'); a(f's_add_u32 s{dv}, s{dv}, s{t+6}')
    a(f's_cmp_lt_u32 s{ty}, 2'); a(f's_cselect_b32 s{dv}, s{ty}, s{dv}')
    a(f's_min_u32 s{dv}, s{dv}, 11')
    a(f's_lshl_b32 s{dv}, s{dv}, 5'); a(f's_add_u32 s{dv}, s{dv}, {DT_OFF}')

def decode_post(a, t, R, Dd, sCsp, sQf):
    Tp,hi,lo,ty=t,t+1,t+2,t+3
    P,M,d,A,lim,Cm,rowmul,size=[R+8+i for i in range(8)]
    u=t+4; w=t+5
    for dst,p1 in ((S_A,48),(S_B,50)):
        for h in range(2):
            a(f's_mov_b32 s{dst+h}, s{42+h}')
            a(f's_cmp_eq_u32 s{ty}, 1'); a(f's_cselect_b32 s{dst+h}, s{p1+h}, s{dst+h}')
            a(f's_cmp_eq_u32 s{ty}, 2'); a(f's_cselect_b32 s{dst+h}, s{46+h}, s{dst+h}')
            a(f's_cmp_eq_u32 s{ty}, 3'); a(f's_cselect_b32 s{dst+h}, s{44+h}, s{dst+h}')
        a(f's_and_b32 s{dst+1}, s{dst+1}, 0xffff'); a(f's_mov_b32 s{dst+2}, s{size}'); a(f's_mov_b32 s{dst+3}, 0x20000')
    a(f's_cmp_lt_u32 s{ty}, 2'); a(f's_cselect_b32 s{u}, s{lo}, s{hi}')
    a(f's_sub_u32 s{w}, s{hi}, 16'); a(f's_cmp_eq_u32 s{rowmul}, {160*1280}'); a(f's_cselect_b32 s{u}, s{w}, s{u}')
    a(f's_mul_i32 s{u}, s{u}, s{rowmul}')
    for i in range(8): a(f's_add_u32 s{R+i}, s{R+i}, s{u}')
    a(f's_cmp_lt_u32 s{ty}, 2'); a(f's_cselect_b32 s{u}, s{hi}, s{lo}'); a(f's_mul_i32 s{Cm}, s{Cm}, s{u}')
    a(f's_mul_i32 s{u}, s{hi}, {160*KB}'); a(f's_lshl_b32 s{w}, s{lo}, 10'); a(f's_add_u32 s{u}, s{u}, s{w}')
    a(f's_add_u32 s{w}, s{u}, s{w}'); a(f's_add_u32 s{w}, s{w}, {WG}'); a(f's_cmp_eq_u32 s{ty}, 1'); a(f's_cselect_b32 s{u}, s{w}, s{u}')
    a(f's_mul_i32 s{w}, s{hi}, {5*KB}'); a(f's_add_u32 s{rowmul}, s{w}, {WD}'); a(f's_cmp_eq_u32 s{ty}, 2'); a(f's_cselect_b32 s{u}, s{rowmul}, s{u}')
    a(f's_add_u32 s{rowmul}, s{w}, {WO}'); a(f's_cmp_eq_u32 s{ty}, 3'); a(f's_cselect_b32 s{u}, s{rowmul}, s{u}')
    a(f's_cmp_eq_u32 s{ty}, 4'); a(f's_cselect_b32 s{u}, {OOB:#x}, s{u}'); a(f's_cselect_b32 s{lim}, 0, s{lim}')
    for f in range(8): a(f's_add_u32 s{Dd+f}, s{Dd+f}, s{u}')
    a(f's_mul_i32 s{u}, s{hi}, {80*128}'); a(f's_lshl_b32 s{w}, s{lo}, 7'); a(f's_add_u32 s{u}, s{u}, s{w}'); a(f's_add_u32 s{u}, s{u}, {CSP}')
    a(f's_cmp_eq_u32 s{ty}, 1'); a(f's_cselect_b32 s{sCsp}, s{u}, {OOB:#x}')
    a(f's_lshl_b32 s{u}, s{hi}, 7'); a(f's_lshl_b32 s{w}, s{lo}, 2'); a(f's_add_u32 s{u}, s{u}, s{w}'); a(f's_add_u32 s{u}, s{u}, {F_QF}')
    a(f's_cmp_eq_u32 s{ty}, 0'); a(f's_cselect_b32 s{sQf}, s{u}, {OOB:#x}')
    v=vT
    a(f'v_lshrrev_b32 v{v}, 4, v{vLANE}'); a(f'v_and_b32 v{v+1}, 15, v{vLANE}'); a(f'v_lshlrev_b32 v{v+2}, 1, v{v}')
    a(f'v_xor_b32 v{v+1}, v{v+1}, v{v+2}'); a(f'v_mul_lo_u32 v{v}, v{v}, s{P}')
    for var in range(2):
        x=v+3; q=v+4; o=v+5+var
        a(f'v_xor_b32 v{x}, {8*var}, v{v+1}')
        a(f'v_mul_lo_u32 v{q}, v{x}, s{M}'); a(f'v_lshrrev_b32 v{q}, 8, v{q}')
        a(f'v_mul_lo_u32 v{o}, v{q}, s{d}'); a(f'v_sub_u32 v{o}, v{x}, v{o}'); a(f'v_lshlrev_b32 v{o}, 4, v{o}')
        a(f'v_mul_lo_u32 v{q}, v{q}, s{A}'); a(f'v_add_u32 v{o}, v{o}, v{q}')
        a(f'v_add_u32 v{o}, v{o}, v{v}'); a(f'v_add_u32 v{o}, s{Cm}, v{o}')
        a(f'v_cmp_le_u32 vcc, s{lim}, v{x}'); a(f'v_mov_b32 v{q}, {OOB:#x}'); a(f'v_cndmask_b32 v{o}, v{o}, v{q}, vcc')

def get_nonce(a, vm):
    lp=L('NP')
    a(f'v_mov_b32 v{vT+1}, 0'); a(f's_mov_b32 s{sSPIN}, 0')
    a.label(lp)
    a(f'buffer_load_dword v{vT}, v{vT+1}, s[{S_DBG}:{S_DBG+3}], 0 offen sc1')
    a(f's_add_u32 s{sSPIN}, s{sSPIN}, 1'); a(f's_cmp_gt_u32 s{sSPIN}, {SPIN_MAX}'); a('s_cbranch_scc1 L_END')
    a('s_waitcnt vmcnt(0)')
    a(f'v_readfirstlane_b32 s{sN}, v{vT}')
    a(f's_cmp_eq_u32 s{sN}, 0'); a(f's_cbranch_scc1 {lp}')
    vm.q=[]

def task_dma(a, vm, k, R, tag):
    v=vT
    a(f's_lshl_b32 s3, s{sW}, 13'); a(f's_add_u32 s3, s3, {k*32768}')
    for i in range(8):
        g16=i>>1; sr_=S_B if (g16&1) else S_A
        a(f's_add_u32 m0, s3, {i*1024}')
        vm.issue(f'buffer_load_dwordx4 v{v+5+(g16&1)}, s[{sr_}:{sr_+3}], s{R+i} offen lds',tag)

def task_finish(a, vm, k, Dd, sCsp):
    v=vT; d=40
    a(f'v_lshrrev_b32 v{v}, 4, v{vLANE}'); a(f'v_bfe_u32 v{v+1}, v{vLANE}, 2, 2'); a(f'v_and_b32 v{v+2}, 3, v{vLANE}')
    a(f'v_lshlrev_b32 v{v+3}, 3, v{v}'); a(f'v_add_u32 v{v+3}, v{v+3}, v{v+1}'); a(f'v_lshlrev_b32 v{v+3}, 8, v{v+3}')
    a(f'v_lshlrev_b32 v{v+2}, 3, v{v+2}'); a(f'v_add_u32 v{v+3}, v{v+3}, v{v+2}')
    a(f'v_and_b32 v{v}, 1, v{v}'); a(f'v_lshlrev_b32 v{v}, 2, v{v}'); a(f'v_add_u32 v{v}, v{v}, v{v+1}'); a(f'v_lshlrev_b32 v{v}, 5, v{v}')
    a(f'v_xor_b32 v{v+3}, v{v+3}, v{v}')
    a(f's_lshl_b32 s3, s{sW}, 13'); a(f's_add_u32 s3, s3, {k*32768}')
    a(f'v_add_u32 v{v+3}, s3, v{v+3}')
    for f in range(8):
        a(f'v_xor_b32 v{v+4+(f&1)}, {f<<5}, v{v+3}')
        a(f'ds_read_b64_tr_b16 v[{d+4*f}:{d+4*f+1}], v{v+4+(f&1)}')
        a(f'ds_read_b64_tr_b16 v[{d+4*f+2}:{d+4*f+3}], v{v+4+(f&1)} offset:1024')
    for f in range(8):
        a(f's_waitcnt lgkmcnt({14-2*f})')
        vm.issue(f'buffer_store_dwordx4 v[{d+4*f}:{d+4*f+3}], v{vL16}, s[{S_WS}:{S_WS+3}], s{Dd+f} offen sc1','st')
    a(f'v_mov_b32 v{v}, 0x3f803f80'); a(f'v_and_b32 v{v+1}, 31, v{vLANE}'); a(f'v_lshlrev_b32 v{v+1}, 2, v{v+1}')
    for f in range(4): a(f'v_mov_b32 v{v+2+f}, 0')
    for j in range(8):
        for f in range(4):
            ff=f if j<4 else f+4
            a(f'v_dot2_f32_bf16 v{v+2+f}, v{d+4*ff+(j&3)}, v{v}, v{v+2+f}')
    for f in range(4): a(f'v_mov_b32 v{v+6+f}, v{v+2+f}')
    for f in range(4): a(f'v_permlane32_swap_b32 v{v+2+f}, v{v+6+f}')
    for f in range(4): a(f'v_add_f32 v{v+2+f}, v{v+2+f}, v{v+6+f}')
    set_exec(a,0xffffffff,0)
    for f in range(4):
        vm.issue(f'buffer_store_dword v{v+2+f}, v{v+1}, s[{S_WS}:{S_WS+3}], s{sCsp} offen offset:{f*20*128 if f*20*128<4096 else 0} sc1','st') if f*20*128<4096 else None
        if f*20*128>=4096:
            a(f's_add_u32 s3, s{sCsp}, {f*20*128}')
            vm.issue(f'buffer_store_dword v{v+2+f}, v{v+1}, s[{S_WS}:{S_WS+3}], s3 offen sc1','st')
    full_exec(a)

def stats_from_res(a, t):
    a(f'v_mov_b32 v{t+2}, 0x3f803f80'); a(f'v_mov_b32 v{t}, 0'); a(f'v_mov_b32 v{t+1}, 0')
    a(f'v_mov_b32 v{t+5}, 0'); a(f'v_mov_b32 v{t+6}, 0')
    for i in range(5):
        a(f'v_dot2_f32_bf16 v{t}, v{vRES+2*i}, v{t+2}, v{t}'); a(f'v_dot2_f32_bf16 v{t+1}, v{vRES+2*i}, v{vRES+2*i}, v{t+1}')
        a(f'v_dot2_f32_bf16 v{t+5}, v{vRES+2*i+1}, v{t+2}, v{t+5}'); a(f'v_dot2_f32_bf16 v{t+6}, v{vRES+2*i+1}, v{vRES+2*i+1}, v{t+6}')
    a(f'v_add_f32 v{t}, v{t}, v{t+5}'); a(f'v_add_f32 v{t+1}, v{t+1}, v{t+6}')
    for sw in ('v_permlane32_swap_b32','v_permlane16_swap_b32'):
        a(f'v_mov_b32 v{t+3}, v{t}'); a(f'v_mov_b32 v{t+4}, v{t+1}')
        a(f'{sw} v{t}, v{t+3}'); a(f'{sw} v{t+1}, v{t+4}')
        a(f'v_add_f32 v{t}, v{t}, v{t+3}'); a(f'v_add_f32 v{t+1}, v{t+1}, v{t+4}')

T0=87; TA=94; TB=95
def prologue(a, vm):
    a('s_cmp_ge_u32 s2, 256'); a('s_cbranch_scc1 L_END')
    a('s_load_dwordx16 s[40:55], s[0:1], 0'); a('s_load_dwordx4 s[56:59], s[0:1], 64')
    a('s_getpc_b64 s[100:101]'); a.label('L_PC')
    a(f's_and_b32 s{sG}, s2, 7'); a(f's_lshr_b32 s{sRHO}, s2, 3')
    a(f'v_lshrrev_b32 v1, 6, v0'); a(f'v_and_b32 v{vLANE}, 63, v0'); a(f'v_readfirstlane_b32 s{sW}, v1')
    a(f's_lshl_b32 s{TA}, s{sW}, 8'); a(f's_add_u32 s{TA}, s{TA}, s2'); a(f's_add_u32 s{TA}, s{TA}, 64')
    a(f's_add_u32 s{TB}, s{TA}, 768'); a(f's_cmp_ge_u32 s{TA}, {320+142}'); a(f's_cselect_b32 s{TB}, 2000, s{TB}')
    a('s_add_u32 s3, s2, 256'); a('s_cmp_ge_u32 s2, 64'); a('s_cselect_b32 s3, 2000, s3')
    a(f's_cmp_eq_u32 s{sW}, 0'); a(f's_cselect_b32 s{TA}, s2, s{TA}'); a(f's_cselect_b32 s{TB}, s3, s{TB}')
    a('s_add_u32 s0, s100, relayout_tab-L_PC'); a('s_addc_u32 s1, s101, 0')
    decode_pre(a,TA,T0)
    a(f's_load_dwordx16 s[60:75], s[0:1], s{T0+4}'); a(f's_load_dwordx8 s[76:83], s[0:1], s{T0+5}')
    a(f'v_lshlrev_b32 v{vL16}, 4, v{vLANE}')
    a(f's_lshl_b32 s3, s{sRHO}, 2'); a(f's_add_u32 s3, s3, s{sW}'); a('s_and_b32 s3, s3, 15'); a('s_lshl_b32 s3, s3, 12')
    a(f'v_lshlrev_b32 v{vT}, 7, v{vLANE}'); a(f'v_add_u32 v{vT}, s3, v{vT}')
    if OPT.get('codepf',1):
        set_exec(a,0xffffffff,0)
        vm.issue(f'global_load_dword v{vDUM}, v{vT}, s[100:101]','code')
        full_exec(a)
    a(f's_lshr_b32 s{sR}, s{sRHO}, 4'); a(f's_and_b32 s{sC16}, s{sRHO}, 15'); a(f's_lshr_b32 s{sQ}, s{sRHO}, 3'); a(f's_and_b32 s{sC8}, s{sRHO}, 7')
    a(f'v_add_u32 v{vL16b}, 0x10000, v{vL16}'); a(f'v_add_u32 v{vL16c}, 0x20000, v{vL16}')
    a(f's_mul_i32 s{sGB}, s{sG}, {GRP_SZ}'); a(f's_add_u32 s{sGB}, s{sGB}, {GRP}')
    a(f's_getreg_b32 s{sXCC}, hwreg(HW_REG_XCC_ID)'); a(f's_and_b32 s{sXCC}, s{sXCC}, 15')
    a(f's_mov_b32 s{sLAYER}, 0'); a(f's_mov_b32 s{sMODE}, 0'); a(f's_mov_b32 s{sPH}, 0')
    a('s_waitcnt lgkmcnt(0)')
    nst=262144 if OPT.get('stamp') else 0
    srd(a,S_WS,58,WS_USED+nst); srd(a,S_X,40,S*D*2); srd(a,S_OUT,54,S*D*2); srd(a,S_DBG,56,256)
    a('s_mov_b32 s46, s52'); a('s_mov_b32 s47, s53')
    lk=L('NW')
    a(f's_or_b32 s3, s2, s{sW}'); a('s_cmp_lg_u32 s3, 0'); a(f's_cbranch_scc1 {lk}')
    a('s_memrealtime s[84:85]'); a('s_waitcnt lgkmcnt(0)'); a('s_and_b32 s84, s84, 0xffffff00'); a('s_max_u32 s84, s84, 0x100')
    a(f'v_mov_b32 v{vT}, s84'); a(f'v_mov_b32 v{vT+1}, 0')
    set_exec(a,1,0)
    vm.issue(f'buffer_store_dword v{vT}, v{vT+1}, s[{S_DBG}:{S_DBG+3}], 0 offen sc1','nonce')
    full_exec(a)
    a.label(lk)

def flag_store(a, sval, soff):
    a(f'v_mov_b32 v{vT}, s{sval}'); a(f'v_mov_b32 v{vT+1}, 0')
    set_exec(a,1,0)
    a(f'buffer_store_dword v{vT}, v{vT+1}, s[{S_WS}:{S_WS+3}], s{soff} offen sc1')
    full_exec(a)

def startup(a, vm, mid, setup):
    stamp(a,'start_rt',True); stamp(a,'start')
    decode_post(a,T0,60,76,96,98)
    task_dma(a,vm,0,60,'t1')
    decode_pre(a,TB,T0)
    a(f's_load_dwordx16 s[60:75], s[0:1], s{T0+4}'); a(f's_load_dwordx8 s[52:59], s[0:1], s{T0+5}')
    setup(a)
    a('s_waitcnt lgkmcnt(0)')
    decode_post(a,T0,60,52,97,99)
    task_dma(a,vm,1,60,'t2')
    stamp(a,'t_issued')
    vm.wait('t1')
    stamp(a,'t1_in')
    task_finish(a,vm,0,76,96)
    vm.wait('t2')
    task_finish(a,vm,1,52,97)
    stamp(a,'t_stored')
    get_nonce(a,vm)
    a(f's_add_u32 s3, s{sN}, 1')
    flag_store(a,3,98); flag_store(a,3,99)
    stamp(a,'early_flag')
    v=vT+8
    a(f'v_and_b32 v{v}, 15, v{vLANE}'); a(f'v_lshrrev_b32 v{v+1}, 4, v{vLANE}')
    a(f'v_mul_u32_u24 v{v}, 1280, v{v}'); a(f'v_lshlrev_b32 v{v+1}, 3, v{v+1}'); a(f'v_add_u32 v{v}, v{v}, v{v+1}')
    a(f's_lshl_b32 s91, s{sG}, 8'); a(f's_lshl_b32 s3, s{sQ}, 6'); a('s_add_u32 s91, s91, s3')
    a(f's_lshl_b32 s3, s{sW}, 4'); a('s_add_u32 s91, s91, s3'); a('s_mul_i32 s91, s91, 1280')
    a(f's_mul_i32 s3, s{sC8}, 160'); a('s_add_u32 s91, s91, s3')
    for b in range(5):
        vm.issue(f'buffer_load_dwordx2 v[{vRES+2*b}:{vRES+2*b+1}], v{v}, s[{S_X}:{S_X+3}], s91 offen offset:{32*b}','res')
    mid(a,vm)
    vm.wait('res')
    t=vT+8
    stats_from_res(a,t)
    a(f'v_and_b32 v{vT}, 15, v{vLANE}'); a(f'v_lshlrev_b32 v{vT}, 3, v{vT}')
    a(f's_lshl_b32 s91, s{sC8}, 11'); a(f's_lshl_b32 s3, s{sQ}, 9'); a('s_add_u32 s91, s91, s3')
    a(f's_lshl_b32 s3, s{sW}, 7'); a('s_add_u32 s91, s91, s3'); a(f's_add_u32 s91, s91, s{sGB}'); a(f's_add_u32 s91, s91, {G_ST0}')
    set_exec(a,0xffff,0)
    vm.issue(f'buffer_store_dwordx2 v[{t}:{t+1}], v{vT}, s[{S_WS}:{S_WS+3}], s91 offen sc1','st')
    full_exec(a)
    stamp(a,'stores_out')

def startup_signal(a, vm):
    vm.wait_all(); a('s_barrier')
    stamp(a,'acked')
    lk=L('SF')
    a(f's_cmp_lg_u32 s{sW}, 0'); a(f's_cbranch_scc1 {lk}')
    a(f's_add_u32 s91, s{sN}, s{sXCC}'); a('s_add_u32 s91, s91, 0x10')
    a(f's_lshl_b32 s92, s{sG}, 7'); a(f's_lshl_b32 s3, s{sRHO}, 2'); a('s_add_u32 s92, s92, s3'); a(f's_add_u32 s92, s92, {F_SF}')
    flag_store(a,91,92)
    a.label(lk)
```

```python
import sys
from asmlib import *
from layout import *
from regs import *
import startup, p1, pn
NAME='interleave_layers__sliding_local_dilated__glu_gated_geglu__prompt'
KN=NAME+'_kernel'

def build():
    a=Asm(); vm=VM(a)
    startup.prologue(a,vm)
    def mid(a,vm):
        p1.x_addr_setup(a,0,92,93,94)
        for n in range(3): p1.emit_list(a,vm,p1.x_slot_dma(0,n,92,93,94,95),('x',n))
    def setup(a):
        p1.stg_addr_setup(a,91)
        p1.attn_const_build(a)
    startup.startup(a,vm,mid,setup)
    startup.startup_signal(a,vm)
    stamp(a,'signalled')
    pn.const_setup(a)
    pn.layer_setup(a)
    p1.x_addr_setup(a,0,sXS,sM0B,sT0)
    def pre0(a,vm):
        o=pn.touch_table(a)
        if OPT.get('touch',1): vm.issue(pn.tl(o),'touch')
        a(f'v_lshlrev_b32 v{vT}, 2, v{vLANE}'); vm.issue(pn.tload(vT,sFLA),'touch')
    def h12(a,vm,F): pn.layer_setup(a)
    def h18(a,vm,F): pn.cs_build_finish(a,vm)
    def h0(a,vm,F): stamp(a,'k0_L0')
    def late(a,vm,F,which):
        if which==0:
            for tx in pn.touch_read_list(216,220): F.add(tx)
            for n in (1,2): F.addl(pn.ring_issue(n),('ring',n))
        else:
            if OPT.get('touch',1):
                F.add('s_waitcnt lgkmcnt(0)'); F.add(pn.tl(217),'touch'); F.add(pn.tl(218),'touch')
    def h15(a,vm,F): pn.cs_build_issue(a,vm,F)
    def h16(a,vm,F): late(a,vm,F,0)
    def h18b(a,vm,F): late(a,vm,F,1)
    p1.p1_kloop(a,vm,0,{'pre':pre0,13:h12,15:h15,16:h16,18:h18b,19:h18,0:h0})
    q_l0=list(vm.q)
    a('s_branch L_COMMON')
    a.label('L_P1_L1')
    vm.q=[]
    p1.x_addr_setup(a,1,sXS,sM0B,sT0)
    for n in range(3): p1.emit_list(a,vm,p1.x_slot_dma(1,n),('x',n))
    p1.p1_kloop(a,vm,1,{16:h16,18:h18b})
    assert [t for t in vm.q if t!='halo']==[t for t in q_l0 if t!='halo'], (vm.q,q_l0)
    a.label('L_COMMON')
    OPT['_inlayer']=1
    stamp(a,'kloop_end')
    pn.RING.reset(); pn.RING.force(1); pn.RING.force(2)
    pn.RING.force(0); bg=[(t,('ring',0) if isv else None) for t,isv in pn.ring_issue(0)]; pn.RING.next=3
    B=p1.p1_tail(a,vm,bg)
    stamp(a,'tail_end')
    p1.attention(a,vm,B)
    stamp(a,'attn_end')
    pn.xbar(a,vm,side=[3,4,5])
    stamp(a,'xbar1')
    pn.p2(a,vm)
    stamp(a,'p2_end')
    pn.xbar(a,vm,side=[9,10,11])
    stamp(a,'xbar2')
    pn.p3(a,vm,22)
    stamp(a,'p3_end')
    pn.xbar(a,vm,side=[23,24,25])
    stamp(a,'xbar3')
    pn.p4(a,vm)
    stamp(a,'p4_end')
    lout=pn.p4_finish(a,vm)
    pn.xbar(a,vm,halo=True)
    stamp(a,'xbar4')
    a(f's_mov_b32 s{sLAYER}, 1')
    pn.layer_setup(a)
    a('s_nop 7'); a('s_nop 7')
    a('s_branch L_P1_L1')
    a.label(lout)
    pn.out_store(a,vm)
    if OPT.get('stamp'):
        a('s_waitcnt vmcnt(0)')
        stamp(a,'end'); stamp(a,'end_rt',True)
    a.label('L_END')
    a('s_waitcnt vmcnt(0)')
    a('s_endpgm')
    pn.emit_safe_blocks(a)
    n=a.fix_hazards()
    hdr=open('cdna_kernels/'+NAME+'.s.ref').read().split('; Override')[0]
    out=hdr+'; Override launch geometry by editing the next line.\n'
    out+=f'; @launch grid=(256,1,1) block=(256,1,1) lds={LDS_TOTAL}\n'
    out+='.amdgcn_target "amdgcn-amd-amdhsa--gfx950"\n.text\n'
    out+=f'.globl {KN}\n.p2align 8\n.type {KN},@function\n{KN}:\n'
    out+=a.text()
    RT,DT=startup.tables()
    out+='.p2align 6\n.type relayout_tab,@object\nrelayout_tab:\n'
    for e in RT+DT: out+='.long '+', '.join(str(x) for x in e)+'\n'
    out+='.size relayout_tab, %d\n'%(5*64+12*32)
    out+=f'''.section .rodata,"a"
.p2align 6
.amdhsa_kernel {KN}
  .amdhsa_next_free_vgpr 512
  .amdhsa_next_free_sgpr 102
  .amdhsa_accum_offset 256
  .amdhsa_group_segment_fixed_size 0
  .amdhsa_kernarg_size 80
  .amdhsa_user_sgpr_count 2
  .amdhsa_user_sgpr_kernarg_segment_ptr 1
  .amdhsa_system_sgpr_workgroup_id_x 1
.end_amdhsa_kernel
'''
    return out,a.count(),n

if __name__=='__main__':
    path=sys.argv[1]
    for kv in sys.argv[2:]:
        k,v=kv.split('='); OPT[k]=int(v)
    o,c,n=build()
    open(path,'w').write(o)
    print('instrs',c,'nops added',n,'bytes',len(o))
    if OPT.get('stamp'): open(path+'.stamps','w').write(','.join(STAMP_NAMES))
```
